```python
import torch

def _softmax(x, axis=-1):
    return torch.softmax(x, dim=axis)
def _gelu(x):
    return torch.nn.functional.gelu(x, approximate="tanh")
def _silu(x):
    return torch.nn.functional.silu(x)
def _sigmoid(x):
    return torch.sigmoid(x)
def _layernorm(x, axis=-1, eps=1e-5):
    m = x.mean(dim=axis, keepdim=True)
    v = x.var(dim=axis, keepdim=True, unbiased=False)
    return (x - m) / torch.sqrt(v + eps)
def _scatter_add(tgt, idx, src, axis=0):
    return tgt.clone().index_add_(axis, idx, src)
def _segment_sum(src, seg, n):
    out = torch.zeros((n,) + src.shape[1:], dtype=src.dtype)
    return out.index_add_(0, seg, src)
def _pad(x, pw):
    flat = tuple(v for pair in reversed(pw) for v in pair)
    return torch.nn.functional.pad(x, flat)

kernel_name = 'standalone__gqa_block_cached__near_ridge'

def setup_inputs():

    _w = (lambda a: (lambda t: t.to(torch.bfloat16) if t.is_floating_point() else t)(torch.as_tensor(a)))
    B, Sq, D = 8, 48, 1024
    Hq, Hkv, Sk, Dh = 32, 4, 2048, 128
    assert Hq % Hkv == 0, (Hq, Hkv)
    return {
        "x": _w((lambda *s: torch.randn(*s, dtype=torch.bfloat16) * 0.8)(B, Sq, D)),
        "k_cache": _w((lambda *s: torch.randn(*s, dtype=torch.bfloat16) * 0.8)(B, Hkv, Sk, Dh)),
        "v_cache": _w((lambda *s: torch.randn(*s, dtype=torch.bfloat16) * 0.05)(B, Hkv, Sk, Dh)),
        "wq": _w((lambda *s: torch.randn(*s, dtype=torch.bfloat16) * 0.8)(D, Hq * Dh) * (D ** -0.5)),
        "wo": _w((lambda *s: torch.randn(*s, dtype=torch.bfloat16) * 0.05)(Hq * Dh, D) * ((Hq * Dh) ** -0.5)),
    }

def reference(x, k_cache, v_cache, wq, wo):
    B, Sq, D = x.shape
    Hq, Dh = 32, 128
    Hkv = k_cache.shape[1]
    rep = Hq // Hkv
    q = (lambda x, *d: x.permute(*d))((x @ wq).reshape(B, Sq, Hq, Dh), 0, 2, 1, 3)
    k = (lambda x, n, axis: torch.repeat_interleave(x, n, dim=axis))(k_cache, rep, axis=1)
    v = (lambda x, n, axis: torch.repeat_interleave(x, n, dim=axis))(v_cache, rep, axis=1)
    scores = torch.einsum("bhqd,bhkd->bhqk", q, k) * (Dh ** -0.5)
    p = _softmax(scores, axis=-1)
    o = torch.einsum("bhqk,bhkd->bhqd", p, v)
    return (lambda x, *d: x.permute(*d))(o, 0, 2, 1, 3).reshape(B, Sq, Hq * Dh) @ wo
```

```python
import re
class Em:
    def __init__(s):
        s.lines=[]; s.t=0
        s.mfmaD={}; s.valuW={}; s.transW={}; s.mfmaC={}; s.dotW={}; s.stD={}
        s.sgprV={}; s.m0t=-99
        s.vm=[]; s.lg=[]
    def raw(s,l): s.lines.append(l)
    def label(s,l): s.lines.append(l+':')
    def c(s,l): s.lines.append('    ; '+l)
    @staticmethod
    def regs(x):
        out=[]
        for m in re.finditer(r'\bv\[(\d+):(\d+)\]|\bv(\d+)\b',x):
            if m.group(3) is not None: out.append(int(m.group(3)))
            else: out+=list(range(int(m.group(1)),int(m.group(2))+1))
        return out
    @staticmethod
    def sregs(x):
        out=[]
        for m in re.finditer(r'\bs\[(\d+):(\d+)\]|\bs(\d+)\b|\b(vcc)\b',x):
            if m.group(4): out.append('vcc')
            elif m.group(3) is not None: out.append(int(m.group(3)))
            else: out+=list(range(int(m.group(1)),int(m.group(2))+1))
        return out
    def nop(s,n):
        while n>0:
            k=min(n,16); s.lines.append(f'    s_nop {k-1}'); s.t+=k; n-=k
    def _need(s,d,regs,w):
        n=0
        for r in regs:
            if r in d: n=max(n,d[r]+w+1-s.t)
        return n
    def i(s,text,tag=None):
        op,_,rest=text.partition(' ')
        ops=[o.strip() for o in rest.split(',')] if rest else []
        need=0
        kind='salu'
        if op.startswith('v_mfma'): kind='mfma'
        elif op.startswith('v_'): kind='valu'
        elif op.startswith('ds_'): kind='ds'
        elif op.startswith('buffer_') or op.startswith('global_'): kind='vmem'
        if kind=='mfma':
            D=s.regs(ops[0]);A=s.regs(ops[1]);B=s.regs(ops[2]);C=s.regs(ops[3])
            need=max(need,s._need(s.mfmaD,A+B,8),s._need(s.valuW,A+B+C,2),s._need(s.dotW,A+B+C+D,3))
            if C!=D: need=max(need,s._need(s.mfmaD,C,8))
        elif kind=='valu':
            trans=op.split('_e')[0] in('v_exp_f32','v_rcp_f32','v_log_f32','v_rsq_f32')
            swap='permlane' in op
            cmpop=op.startswith('v_cmp'); rfl=op.startswith('v_readfirstlane') or op.startswith('v_readlane')
            if cmpop or rfl: D=[]; S=s.regs(','.join(ops[1:]))
            else: D=s.regs(ops[0]); S=s.regs(','.join(ops[1:]))
            if swap: D=s.regs(rest); S=D
            if op.startswith('v_dot2c') or op.startswith('v_fmac'): S=S+D
            need=max(need,s._need(s.mfmaD,S+D,8),s._need(s.mfmaC,D,3),s._need(s.stD,D,2))
            if not trans: need=max(need,s._need(s.transW,S,1))
            if swap: need=max(need,s._need(s.valuW,S,2))
            if rfl: need=max(need,s._need(s.valuW,S,1))
            if op.startswith('v_dot2c'): need=max(need,s._need(s.dotW,s.regs(','.join(ops[1:])),3))
            else: need=max(need,s._need(s.dotW,S+D,3))
            need=max(need,s._need(s.sgprV,s.sregs(','.join(ops[1:])),2))
        elif kind in('ds','vmem'):
            R=s.regs(rest)
            need=max(need,s._need(s.mfmaD,R,8),s._need(s.dotW,R,3),s._need(s.transW,R,1))
            if kind=='vmem':
                need=max(need,s._need(s.sgprV,s.sregs(rest),5))
                if ' lds' in text: need=max(need,s.m0t+2-s.t)
        else:
            need=max(need,s._need(s.sgprV,s.sregs(','.join(ops[1:])),1)) if not op.startswith('s_cbranch') else need
        if need>0: s.nop(need)
        s.lines.append('    '+text)
        t=s.t; s.t+=1
        if kind=='mfma':
            for r in D: s.mfmaD[r]=t
            for r in C: s.mfmaC[r]=t
        elif kind=='valu':
            for r in D:
                s.valuW[r]=t
                s.mfmaD.pop(r,None)
                if trans: s.transW[r]=t
                else: s.transW.pop(r,None)
                if op.startswith('v_dot2c'): s.dotW[r]=t
                else: s.dotW.pop(r,None)
            if cmpop or rfl:
                for r in s.sregs(ops[0]): s.sgprV[r]=t
        elif kind=='vmem':
            s.vm.append(tag)
            if 'store_dwordx4' in op or 'store_dwordx3' in op:
                for r in s.regs(ops[0]): s.stD[r]=t
        elif kind=='ds':
            s.lg.append(tag)
        else:
            if ops and ops[0]=='m0': s.m0t=t
    def wait(s,vm=None,lg=None):
        parts=[]
        for q,tags,name,mx in((s.vm,vm,'vmcnt',63),(s.lg,lg,'lgkmcnt',15)):
            if tags is None: continue
            if tags=='all': idx=len(q)-1
            else:
                if not isinstance(tags,(list,set,tuple)): tags=[tags]
                idx=max([k for k,x in enumerate(q) if x in tags],default=-1)
            if idx<0: continue
            n=len(q)-1-idx
            if n>mx:
                n=mx; idx=len(q)-1-mx
            parts.append(f'{name}({n})')
            del q[:idx+1]
        if parts:
            s.lines.append('    s_waitcnt '+' '.join(parts)); s.t+=1
    def barrier(s):
        s.lines.append('    s_barrier'); s.t+=1
    def text(s): return '\n'.join(s.lines)+'\n'
def vr(a,n=4): return f'v[{a}:{a+n-1}]'
```

```python
from emit import Em, vr
import struct
def f2u(x): return struct.unpack('<I',struct.pack('<f',x))[0]
NAME1='gqa_attn_kernel'
O=lambda dt,j: (dt*3+j)*4
L=lambda j: 96+4*j
Q=lambda j,ks: 108+(j*4+ks)*4
NM=lambda j: 156+4*j
ONES=168
S=lambda t,j: 172+(t*3+j)*4
KR=lambda f: 196+4*(f%12)
VX=244
vKoff,vVoff0,vVoff1,vVrd0,vVrd1,T0,T1,T2=248,249,250,251,252,253,254,255
SLOT=24576; QB=147456; MLB=159744
def gen(cfg):
    e=Em(); I=e.i
    e.raw(f'.globl {NAME1}\n.p2align 8\n.type {NAME1},@function\n{NAME1}:')
    I('s_cmp_ge_u32 s2, 256'); I('s_cbranch_scc1 K1_END')
    I('s_load_dwordx4 s[24:27], s[0:1], 0')
    I('s_load_dwordx4 s[28:31], s[0:1], 16')
    I('s_load_dwordx2 s[32:33], s[0:1], 56')
    I('v_lshrrev_b32 v1, 6, v0'); I('v_and_b32 v2, 63, v0')
    I('v_readfirstlane_b32 s34, v1')
    I('s_and_b32 s35, s2, 7'); I('s_lshr_b32 s36, s2, 3')
    I('s_lshr_b32 s37, s35, 1')
    I('s_and_b32 s38, s35, 1'); I('s_lshl_b32 s38, s38, 2'); I('s_lshr_b32 s39, s36, 3'); I('s_add_u32 s38, s38, s39')
    I('s_and_b32 s39, s36, 7'); I('s_lshl_b32 s40, s37, 3'); I('s_add_u32 s39, s39, s40')
    vWQoff,vXoff,vWQrd,vXrd0,vXrd1,vg,vq=64,65,66,67,68,69,70
    I(f'v_lshrrev_b32 v{vg}, 4, v2'); I(f'v_and_b32 v{vq}, 15, v2')
    I('v_lshrrev_b32 v3, 3, v2')
    I('v_bfe_u32 v4, v2, 1, 2')
    I('v_and_b32 v5, 1, v2'); I('v_lshlrev_b32 v5, 4, v5')
    I(f'v_lshl_add_u32 v6, v4, 8, v5')
    I(f'v_lshl_add_u32 v{vVoff0}, v3, 5, v6')
    I(f'v_xor_b32 v{vVoff1}, 32, v{vVoff0}')
    I('s_and_b32 s40, s34, 1'); I('s_lshl_b32 s41, s34, 16')
    I('v_xor_b32 v7, s40, v3'); I('v_lshl_add_u32 v7, v7, 5, v5'); I('v_lshl_add_u32 v7, v4, 13, v7')
    I(f'v_add_u32 v{vWQoff}, s41, v7')
    I('s_lshl_b32 s41, s34, 3')
    I('v_add_u32 v7, s41, v3'); I('v_bfe_u32 v8, v7, 1, 3'); I('v_and_b32 v9, 7, v2'); I('v_xor_b32 v8, v8, v9')
    I('v_lshlrev_b32 v8, 4, v8'); I(f'v_lshl_add_u32 v{vXoff}, v7, 11, v8')
    I(f'v_and_b32 v7, 1, v{vg}'); I('v_xor_b32 v8, s34, v7'); I('v_lshlrev_b32 v8, 7, v8')
    I(f'v_lshl_add_u32 v8, v{vg}, 11, v8'); I(f'v_lshl_add_u32 v{vWQrd}, v{vq}, 3, v8')
    I(f'v_lshrrev_b32 v8, 1, v{vq}'); I(f'v_xor_b32 v8, v8, v{vg}'); I('v_lshlrev_b32 v8, 4, v8')
    I(f'v_lshl_add_u32 v{vXrd0}, v{vq}, 7, v8'); I(f'v_xor_b32 v{vXrd1}, 64, v{vXrd0}')
    I(f'v_lshlrev_b32 v8, 4, v{vg}'); I(f'v_lshl_add_u32 v{vKoff}, v{vq}, 8, v8')
    I('s_lshl_b32 s42, s34, 13')
    I(f'v_lshlrev_b32 v8, 7, v7'); I(f'v_lshl_add_u32 v8, v{vg}, 10, v8'); I(f'v_lshl_add_u32 v8, v{vq}, 3, v8')
    I(f'v_add_u32 v{vVrd0}, s42, v8'); I(f'v_xor_b32 v{vVrd1}, 128, v{vVrd0}')
    I('s_lshl_b32 s43, s34, 11')
    I('s_lshl_b32 s44, s34, 10')
    e.raw('    s_waitcnt lgkmcnt(0)')
    I('s_mul_i32 s45, s38, 98304'); I('s_add_u32 s4, s24, s45'); I('s_addc_u32 s5, s25, 0'); I('s_mov_b32 s6, 98304'); I('s_mov_b32 s7, 0x20000')
    I('s_lshl_b32 s45, s39, 8'); I('s_add_u32 s8, s30, s45'); I('s_addc_u32 s9, s31, 0'); I('s_sub_u32 s10, 0x800000, s45'); I('s_mov_b32 s11, 0x20000')
    I('s_lshl_b32 s45, s38, 2'); I('s_add_u32 s45, s45, s37'); I('s_lshl_b32 s45, s45, 19'); I('s_lshl_b32 s46, s34, 16'); I('s_add_u32 s45, s45, s46')
    I('s_add_u32 s12, s26, s45'); I('s_addc_u32 s13, s27, 0'); I('s_mov_b32 s14, 65536'); I('s_mov_b32 s15, 0x20000')
    I('s_add_u32 s16, s28, s45'); I('s_addc_u32 s17, s29, 0'); I('s_mov_b32 s18, 65536'); I('s_mov_b32 s19, 0x20000')
    I('s_lshl_b32 s45, s38, 5'); I('s_add_u32 s45, s45, s39'); I('s_mul_i32 s45, s45, 12288')
    I('s_add_u32 s20, s32, s45'); I('s_addc_u32 s21, s33, 0'); I('s_mov_b32 s22, 12288'); I('s_mov_b32 s23, 0x20000')
    def dma_chunk(c):
        base=((c+2)%6)*SLOT
        I(f's_add_u32 m0, s43, {base}'); I(f's_mov_b32 s47, {c*524288}')
        I(f'buffer_load_dwordx4 v{vWQoff}, s[8:11], s47 offen lds',('c',c))
        I(f's_add_u32 m0, s43, {base+1024}'); I(f's_mov_b32 s48, {c*524288+32768}')
        I(f'buffer_load_dwordx4 v{vWQoff}, s[8:11], s48 offen lds',('c',c))
        I(f's_add_u32 m0, s44, {base+16384}'); I(f's_mov_b32 s49, {c*128}')
        I(f'buffer_load_dwordx4 v{vXoff}, s[4:7], s49 offen lds',('c',c))
    def kload(f):
        if f>=64: return
        tile,t,ks=f//8,(f//4)%2,f%4
        off=tile*8192+t*4096+ks*64
        I(f's_mov_b32 s50, {off&~4095}')
        I(f'buffer_load_dwordx4 {vr(KR(f))}, v{vKoff}, s[12:15], s50 offen offset:{off&4095}',('k',f))
    def vdma(tile):
        if tile>=8: return
        for hf in range(2):
            I(f's_add_u32 m0, s42, {(tile&1)*65536+hf*4096}'); I(f's_mov_b32 s51, {tile*8192+hf*4096}')
            for i in range(4):
                I(f'buffer_load_dwordx4 v{vVoff1 if i&1 else vVoff0}, s[16:19], s51 offen offset:{i*1024} lds',('v',tile))
    for c in range(5): dma_chunk(c)
    for f in range(12): kload(f)
    QA=lambda j: S(0,j)
    for c in range(16):
        base=((c+2)%6)*SLOT
        I(f'v_add_u32 v72, {base}, v{vWQrd}'); I(f'v_add_u32 v73, {base+16384}, v{vXrd0}'); I(f'v_add_u32 v74, {base+16384}, v{vXrd1}')
        e.wait(vm=[('c',c)]); e.barrier()
        for ks in range(2):
            for t in range(2): I(f'ds_read_b64_tr_b16 {vr(ks*16+2*t,2)}, v72 offset:{ks*8192+t*1024}',('a',ks))
            for j in range(3): I(f'ds_read_b128 {vr(ks*16+4+4*j)}, v{73+ks} offset:{j*2048}',('b',ks,j))
        if c+5<16: dma_chunk(c+5)
        if c==13: vdma(0)
        for ks in range(2):
            for j in range(3):
                e.wait(lg=[('a',ks),('b',ks,j)])
                I(f'v_mfma_f32_16x16x32_bf16 {vr(QA(j))}, {vr(ks*16)}, {vr(ks*16+4+4*j)}, '+('0' if c==0 and ks==0 else vr(QA(j))))
    import math
    I(f's_mov_b32 s52, {hex(f2u(math.log2(math.e)/math.sqrt(128)))}')
    I('s_lshl_b32 s45, s34, 1')
    I(f'v_lshrrev_b32 v8, 1, v{vg}'); I('v_add_u32 v8, s45, v8'); I(f'v_xor_b32 v8, v8, v{vq}'); I('v_lshlrev_b32 v8, 4, v8')
    I(f'v_lshl_add_u32 v8, v{vq}, 8, v8'); I(f'v_and_b32 v9, 1, v{vg}'); I('v_lshl_add_u32 v8, v9, 3, v8'); I(f'v_add_u32 v8, {QB}, v8')
    I(f'v_xor_b32 v10, v{vg}, v{vq}'); I('v_lshlrev_b32 v10, 4, v10'); I(f'v_lshl_add_u32 v10, v{vq}, 8, v10'); I(f'v_add_u32 v10, {QB}, v10')
    for ks in range(1,4): I(f'v_xor_b32 v{10+ks}, {ks*64}, v10')
    for j in range(3):
        for r in range(4): I(f'v_mul_f32 v{QA(j)+r}, s52, v{QA(j)+r}')
        I(f'v_cvt_pk_bf16_f32 v{16+2*j}, v{QA(j)}, v{QA(j)+1}'); I(f'v_cvt_pk_bf16_f32 v{17+2*j}, v{QA(j)+2}, v{QA(j)+3}')
        I(f'ds_write_b64 v8, {vr(16+2*j,2)} offset:{j*4096}','qw')
    e.wait(lg='all'); e.barrier()
    for ks in range(4):
        for j in range(3): I(f'ds_read_b128 {vr(Q(j,ks))}, v{10+ks} offset:{j*4096}',('q',ks))
    vdma(1)
    for r in range(4): I(f'v_mov_b32 v{ONES+r}, 0x3f803f80')
    I(f's_mov_b32 s53, {hex(f2u(cfg.get("T",16.0)))}')
    e.wait(lg='all')
    for r in range(108): I(f'v_mov_b32 v{r}, 0')
    rare=[]
    def rowmax(j,d):
        a,b=S(0,j),S(1,j)
        I(f'v_max3_f32 v{d}, v{a}, v{a+1}, v{a+2}'); I(f'v_max3_f32 v{d}, v{d}, v{a+3}, v{b}')
        I(f'v_max3_f32 v{d}, v{d}, v{b+1}, v{b+2}'); I(f'v_max_f32 v{d}, v{d}, v{b+3}')
        I(f'v_mov_b32 v{T1}, v{d}'); I(f'v_permlane32_swap_b32 v{d}, v{T1}'); I(f'v_max_f32 v{d}, v{d}, v{T1}')
        I(f'v_mov_b32 v{T1}, v{d}'); I(f'v_permlane16_swap_b32 v{d}, v{T1}'); I(f'v_max_f32 v{d}, v{d}, v{T1}')
    for tile in range(8):
        e.c(f'---- tile {tile}')
        for t in range(2):
            for ks in range(4):
                f=tile*8+t*4+ks
                e.wait(vm=[('k',f)])
                for j in range(3):
                    cc=vr(S(t,j)) if ks else ('0' if tile==0 else vr(NM(j)))
                    I(f'v_mfma_f32_16x16x32_bf16 {vr(S(t,j))}, {vr(KR(f))}, {vr(Q(j,ks))}, {cc}')
                kload(f+12)
        sl=(tile&1)*65536
        VF=[VX,S(1,0),S(1,1),S(1,2)]
        def vread(dt):
            a=vVrd1 if dt&1 else vVrd0
            for t in range(2):
                I(f'ds_read_b64_tr_b16 {vr(VF[dt%4]+2*t,2)}, v{a} offset:{t*4096+(dt&~1)*128}',('vf',dt))
        e.wait(vm=[('v',tile)])
        vread(0)
        if tile==0:
            for j in range(3):
                rowmax(j,T0)
                for t in range(2):
                    for r in range(4): I(f'v_sub_f32 v{S(t,j)+r}, v{S(t,j)+r}, v{T0}')
                for r in range(4): I(f'v_sub_f32 v{NM(j)+r}, 0, v{T0}')
        else:
            regs=[S(t,j)+r for t in range(2) for j in range(3) for r in range(4)]
            I(f'v_max3_f32 v{T0}, v{regs[0]}, v{regs[1]}, v{regs[2]}')
            I(f'v_max3_f32 v{T1}, v{regs[3]}, v{regs[4]}, v{regs[5]}')
            for k in range(6,24,4):
                I(f'v_max3_f32 v{T0}, v{T0}, v{regs[k]}, v{regs[k+1]}')
                if k+3<24: I(f'v_max3_f32 v{T1}, v{T1}, v{regs[k+2]}, v{regs[k+3]}')
            I(f'v_max_f32 v{T0}, v{T0}, v{T1}')
            I(f'v_cmp_lt_f32 vcc, s53, v{T0}')
            I(f's_cbranch_vccnz K1_RARE{tile}')
            e.label(f'K1_BACK{tile}'); rare.append(tile)
        for j in range(3):
            for t in range(2):
                for r in range(4): I(f'v_exp_f32 v{S(t,j)+r}, v{S(t,j)+r}')
            a,b=S(0,j),S(1,j)
            I(f'v_cvt_pk_bf16_f32 v{a}, v{a}, v{a+1}'); I(f'v_cvt_pk_bf16_f32 v{a+1}, v{a+2}, v{a+3}')
            I(f'v_cvt_pk_bf16_f32 v{a+2}, v{b}, v{b+1}'); I(f'v_cvt_pk_bf16_f32 v{a+3}, v{b+2}, v{b+3}')
            vread(1+j)
        for j in range(3): I(f'v_mfma_f32_16x16x32_bf16 {vr(L(j))}, {vr(ONES)}, {vr(S(0,j))}, {vr(L(j))}')
        for dt in range(8):
            e.wait(lg=[('vf',dt)])
            for j in range(3): I(f'v_mfma_f32_16x16x32_bf16 {vr(O(dt,j))}, {vr(VF[dt%4])}, {vr(S(0,j))}, {vr(O(dt,j))}')
            if dt+4<8: vread(dt+4)
            if dt==7-cfg.get('vdma_early',0):
                e.wait(lg='all'); vdma(tile+2)
        I(f'v_xor_b32 v{vVrd0}, 0x10000, v{vVrd0}'); I(f'v_xor_b32 v{vVrd1}, 0x10000, v{vVrd1}')
    e.c('epilogue')
    ln,g_,q_=S(0,0),S(0,0)+1,S(0,0)+2
    A0,A1=S(0,1),S(0,1)+1
    I(f'v_mbcnt_lo_u32_b32 v{ln}, -1, 0'); I(f'v_mbcnt_hi_u32_b32 v{ln}, -1, v{ln}')
    I(f'v_and_b32 v{q_}, 15, v{ln}')
    I('s_mul_i32 s45, s34, 384'); I(f's_add_u32 s45, s45, {MLB}')
    I(f'v_lshlrev_b32 v{A1}, 3, v{q_}'); I(f'v_add_u32 v{A0}, s45, v{A1}'); I(f'v_add_u32 v{A1}, {MLB}, v{A1}')
    for j in range(3):
        I(f'v_mov_b32 v{NM(j)+1}, v{L(j)}')
        I(f'ds_write_b64 v{A0}, {vr(NM(j),2)} offset:{j*128}','ml')
    e.wait(lg='all'); e.barrier()
    ML=lambda j,w: Q(0,0)+(j*8+w)*2
    for j in range(3):
        for w in range(8): I(f'ds_read_b64 {vr(ML(j,w),2)}, v{A1} offset:{w*384+j*128}',('ml',j))
    SC=lambda j: KR(0)+j
    for j in range(3):
        e.wait(lg=[('ml',j)])
        mn=KR(1)+j
        I(f'v_min3_f32 v{mn}, v{ML(j,0)}, v{ML(j,1)}, v{ML(j,2)}'); I(f'v_min3_f32 v{mn}, v{mn}, v{ML(j,3)}, v{ML(j,4)}')
        I(f'v_min3_f32 v{mn}, v{mn}, v{ML(j,5)}, v{ML(j,6)}'); I(f'v_min_f32 v{mn}, v{mn}, v{ML(j,7)}')
        for w in range(8): I(f'v_sub_f32 v{ML(j,w)}, v{mn}, v{ML(j,w)}')
        I(f'v_sub_f32 v{SC(j)}, v{mn}, v{NM(j)}')
        for w in range(8): I(f'v_exp_f32 v{ML(j,w)}, v{ML(j,w)}')
        I(f'v_exp_f32 v{SC(j)}, v{SC(j)}')
        lt=KR(2)+j
        I(f'v_mul_f32 v{lt}, v{ML(j,0)}, v{ML(j,0)+1}')
        for w in range(1,8): I(f'v_fmac_f32 v{lt}, v{ML(j,w)}, v{ML(j,w)+1}')
        I(f'v_rcp_f32 v{lt}, v{lt}'); I(f'v_mul_f32 v{SC(j)}, v{SC(j)}, v{lt}')
    I('s_lshl_b32 s45, s34, 9'); I(f'v_lshlrev_b32 v{A1}, 3, v{ln}'); I(f'v_add_u32 v{A0}, s45, v{A1}'); I(f'v_add_u32 v{S(0,2)}, 49152, v{A0}')
    for dt in range(8):
        for j in range(3):
            o=O(dt,j)
            for r in range(4): I(f'v_mul_f32 v{o+r}, v{SC(j)}, v{o+r}')
            I(f'v_cvt_pk_bf16_f32 v{o}, v{o}, v{o+1}'); I(f'v_cvt_pk_bf16_f32 v{o+1}, v{o+2}, v{o+3}')
            off=(dt*3+j)*4096
            I(f'ds_write_b64 v{A0 if off<49152 else S(0,2)}, {vr(o,2)} offset:{off%49152}','pw')
    I('s_mul_i32 s45, s34, 12288'); I(f'v_add_u32 v{A1}, s45, v{A1}')
    I('s_mov_b32 s54, 0x3f80'); I('s_mov_b32 s55, 0x3f800000')
    I('s_lshr_b32 s45, s34, 1'); I('s_mul_i32 s45, s45, 3072'); I('s_lshl_b32 s46, s40, 3'); I('s_add_u32 s45, s45, s46')
    I(f'v_lshlrev_b32 v{A0}, 4, v{ln}'); I(f'v_add_u32 v{A0}, s45, v{A0}')
    e.wait(lg='all')
    for r in range(12): I(f'v_mov_b32 v{48+r}, 0')
    e.barrier()
    for j in range(3):
        for w in range(8): I(f'ds_read_b64 {vr((j*8+w)*2,2)}, v{A1} offset:{j*4096+w*512}',('pr',j,w))
    for j in range(3):
        for w in range(8):
            e.wait(lg=[('pr',j,w)])
            p=(j*8+w)*2; a=48+4*j
            I(f'v_dot2c_f32_bf16 v{a}, s54, v{p}'); I(f'v_dot2c_f32_bf16 v{a+1}, s55, v{p}')
            I(f'v_dot2c_f32_bf16 v{a+2}, s54, v{p+1}'); I(f'v_dot2c_f32_bf16 v{a+3}, s55, v{p+1}')
        a=48+4*j
        I(f'v_cvt_pk_bf16_f32 v{60+2*j}, v{a}, v{a+1}'); I(f'v_cvt_pk_bf16_f32 v{61+2*j}, v{a+2}, v{a+3}')
        I(f'buffer_store_dwordx2 {vr(60+2*j,2)}, v{A0}, s[20:23], 0 offen offset:{j*1024}')
    e.label('K1_END'); e.raw('    s_endpgm')
    for tile in rare:
        e.label(f'K1_RARE{tile}'); e.nop(8)
        for j in range(3):
            rowmax(j,T0)
            I(f'v_max_f32 v{T0}, 0, v{T0}')
            I(f'v_exp_f32 v{T2}, -v{T0}')
            for t in range(2):
                for r in range(4): I(f'v_sub_f32 v{S(t,j)+r}, v{S(t,j)+r}, v{T0}')
            for r in range(4): I(f'v_sub_f32 v{NM(j)+r}, v{NM(j)+r}, v{T0}')
            for r in range(4): I(f'v_mul_f32 v{L(j)+r}, v{T2}, v{L(j)+r}')
            for dt in range(8):
                for r in range(4): I(f'v_mul_f32 v{O(dt,j)+r}, v{T2}, v{O(dt,j)+r}')
        e.nop(2); I(f's_branch K1_BACK{tile}')
    return e.text()
```

```python
from emit import Em, vr
NAME2='gqa_oproj_kernel'
ACC=lambda v,j: (v*3+j)*4
AF=lambda p,v: 24+(p*2+v)*4
def gen(cfg):
    R=cfg.get('k2ring',10); WS=R*2048
    OF=lambda s,j: 48+((s%R)*3+j)*4
    vO,vW,vA0,vA1=40,41,42,43
    e=Em(); I=e.i
    e.raw(f'.globl {NAME2}\n.p2align 8\n.type {NAME2},@function\n{NAME2}:')
    I('s_cmp_ge_u32 s2, 256'); I('s_cbranch_scc1 K2_END')
    I('s_load_dwordx4 s[24:27], s[0:1], 32')
    I('s_load_dwordx2 s[28:29], s[0:1], 56')
    I('v_lshrrev_b32 v1, 6, v0'); I('v_and_b32 v2, 63, v0')
    I('v_readfirstlane_b32 s34, v1')
    I('s_and_b32 s35, s2, 7'); I('s_lshr_b32 s36, s2, 3')
    I('s_and_b32 s38, s35, 1'); I('s_lshl_b32 s38, s38, 2'); I('s_lshr_b32 s39, s36, 3'); I('s_add_u32 s38, s38, s39')
    I('s_lshr_b32 s37, s35, 1'); I('s_lshl_b32 s37, s37, 3'); I('s_and_b32 s39, s36, 7'); I('s_add_u32 s39, s39, s37')
    I('v_lshrrev_b32 v3, 4, v2'); I('v_and_b32 v4, 15, v2')
    I(f'v_lshlrev_b32 v{vO}, 4, v2')
    I('v_bfe_u32 v5, v2, 1, 2'); I('v_lshl_add_u32 v5, v3, 2, v5'); I('v_lshlrev_b32 v5, 11, v5')
    I('v_lshrrev_b32 v6, 3, v2'); I('v_xor_b32 v6, v6, v3'); I('v_and_b32 v6, 1, v6'); I('v_lshl_add_u32 v5, v6, 5, v5')
    I('v_and_b32 v6, 1, v2'); I(f'v_lshl_add_u32 v{vW}, v6, 4, v5')
    I(f's_mul_i32 s42, s34, {WS}')
    I('v_and_b32 v6, 1, v3'); I('v_lshlrev_b32 v6, 7, v6'); I('v_lshl_add_u32 v6, v3, 8, v6'); I('v_lshl_add_u32 v6, v4, 3, v6')
    I(f'v_xor_b32 v7, 128, v6'); I(f'v_add_u32 v{vA0}, s42, v6'); I(f'v_add_u32 v{vA1}, s42, v7')
    e.raw('    s_waitcnt lgkmcnt(0)')
    I('s_lshl_b32 s45, s34, 20'); I('s_lshl_b32 s46, s39, 6'); I('s_add_u32 s45, s45, s46')
    I('s_add_u32 s8, s24, s45'); I('s_addc_u32 s9, s25, 0'); I('s_sub_u32 s10, 0x100000, s46'); I('s_mov_b32 s11, 0x20000')
    I('s_lshl_b32 s45, s38, 3'); I('s_add_u32 s45, s45, s34'); I('s_mul_i32 s45, s45, 49152')
    I('s_add_u32 s4, s28, s45'); I('s_addc_u32 s5, s29, 0'); I('s_mov_b32 s6, 49152'); I('s_mov_b32 s7, 0x20000')
    I('s_mov_b32 s12, s26'); I('s_mov_b32 s13, s27'); I('s_mov_b32 s14, 786432'); I('s_mov_b32 s15, 0x20000')
    def ld(s):
        if s>=16: return
        for t in range(2):
            I(f's_add_u32 m0, s42, {(s%R)*2048+t*1024}'); I(f's_mov_b32 s47, {s*65536+t*32768}')
            I(f'buffer_load_dwordx4 v{vW}, s[8:11], s47 offen lds',('w',s))
        I(f's_mov_b32 s48, {s*3072}')
        for j in range(3): I(f'buffer_load_dwordx4 {vr(OF(s,j))}, v{vO}, s[4:7], s48 offen offset:{j*1024}',('o',s,j))
    def rd(s):
        if s>=16: return
        e.wait(vm=[('w',s)])
        for v in range(2):
            for t in range(2): I(f'ds_read_b64_tr_b16 {vr(AF(s&1,v)+2*t,2)}, v{vA1 if v else vA0} offset:{(s%R)*2048+t*1024}',('a',s,v))
    for s in range(R): ld(s)
    I('s_cmp_ge_u32 s34, 3'); I('s_cselect_b32 s50, 1, 0'); I('s_mul_i32 s51, s50, 3'); I('s_sub_u32 s51, s34, s51')
    I('s_mul_i32 s52, s38, 48'); I('s_lshl_b32 s53, s51, 4'); I('s_add_u32 s52, s52, s53'); I('s_lshl_b32 s52, s52, 11')
    I('s_lshl_b32 s53, s50, 5'); I('s_add_u32 s52, s52, s53'); I('s_add_u32 s52, s52, s46')
    I('v_lshlrev_b32 v44, 11, v4'); I('v_lshl_add_u32 v44, v3, 3, v44'); I('v_add_u32 v44, s52, v44')
    I(f'v_add_u32 v45, s42, v{vO}')
    I('s_lshl_b32 s53, s34, 10'); I(f'v_add_u32 v46, s53, v{vO}'); I(f'v_add_u32 v47, {3*WS}, v46')
    rd(0)
    for s in range(16):
        rd(s+1)
        for v in range(2):
            for j in range(3):
                e.wait(vm=[('o',s,j)],lg=[('a',s,v)])
                I(f'v_mfma_f32_16x16x32_bf16 {vr(ACC(v,j))}, {vr(AF(s&1,v))}, {vr(OF(s,j))}, '+('0' if s==0 else vr(ACC(v,j))))
        ld(s+R)
    for k in range(6): I(f'ds_write_b128 v45, {vr(4*k)} offset:{k*1024}','pw')
    I(f'v_add_u32 v40, {6*WS}, v46')
    e.wait(lg='all'); e.barrier()
    I('s_cmp_ge_u32 s34, 6'); I('s_cbranch_scc1 K2_END')
    for w in range(8): I(f'ds_read_b128 {vr(48+4*w)}, v{[46,47,40][w//3]} offset:{(w%3)*WS}',('pr',w))
    for w in range(1,8):
        e.wait(lg=[('pr',w)])
        I(f'v_pk_add_f32 v[48:49], v[48:49], {vr(48+4*w,2)}'); I(f'v_pk_add_f32 v[50:51], v[50:51], {vr(50+4*w,2)}')
    I('v_cvt_pk_bf16_f32 v48, v48, v49'); I('v_cvt_pk_bf16_f32 v49, v50, v51')
    I('buffer_store_dwordx2 v[48:49], v44, s[12:15], 0 offen')
    e.label('K2_END'); e.raw('    s_endpgm')
    return e.text(), 48+R*12, 8*WS
```

```python
import sys, json, importlib
sys.path.insert(0,'gen')
import k1,k2
def build(cfg,path):
    ref=open('standalone__gqa_block_cached__near_ridge.s.ref').read().split('\n')
    hdr=[l for l in ref if l.startswith(';') and '@launch' not in l]
    t1=k1.gen(cfg); t2,nv2,lds2=k2.gen(cfg)
    nv2=(nv2+7)//8*8
    out='\n'.join(hdr)+'\n'
    out+=f'; @launch kernel={k1.NAME1} grid=(256,1,1) block=(512,1,1) lds=163840\n'
    out+=f'; @launch kernel={k2.NAME2} grid=(256,1,1) block=(512,1,1) lds={lds2}\n'
    out+='.amdgcn_target "amdgcn-amd-amdhsa--gfx950"\n.text\n'+t1+t2
    out+='.section .rodata,"a"\n'
    for n,nv in((k1.NAME1,256),(k2.NAME2,nv2)):
        out+=f'''.p2align 6
.amdhsa_kernel {n}
  .amdhsa_next_free_vgpr {nv}
  .amdhsa_next_free_sgpr 96
  .amdhsa_accum_offset {nv}
  .amdhsa_group_segment_fixed_size 0
  .amdhsa_kernarg_size 64
  .amdhsa_user_sgpr_count 2
  .amdhsa_user_sgpr_kernarg_segment_ptr 1
  .amdhsa_system_sgpr_workgroup_id_x 1
.end_amdhsa_kernel
'''
    open(path,'w').write(out)
if __name__=='__main__':
    cfg=json.loads(sys.argv[1]) if len(sys.argv)>1 else {}
    path=sys.argv[2] if len(sys.argv)>2 else 'standalone__gqa_block_cached__near_ridge.s'
    build(cfg,path)
```

```python
from emit import Em, vr
import struct, math
def f2u(x): return struct.unpack('<I',struct.pack('<f',x))[0]
NAME1='gqa_attn_kernel'
O=lambda dt,j: (dt*3+j)*4
L=lambda j: 96+4*j
Q=lambda j,ks: 108+(j*4+ks)*4
NM=lambda j: 156+4*j
ONES=168
S=lambda t,j: 172+(t*3+j)*4
KB=lambda ks: 196+4*ks
VF=lambda dt: KB(dt) if dt<2 else 212+4*(dt-2)
DM=lambda i: 236+i
KA=lambda ks: 240+ks
VA=lambda dt: 244+dt
T0,T1,T2,vWO=252,253,254,255
RG=20480; QS=3072; QOFF=18432; PB=4096; MLB=16384
WT=4<<20
def gen(cfg):
    e=Em(); I=e.i
    TS=cfg.get('ts',0)
    tsn=[0]
    def ts():
        if not TS: return
        k=tsn[0]; tsn[0]+=1
        e.raw(f'    s_memtime s[{64+2*k}:{65+2*k}]')
        e.raw('    s_waitcnt lgkmcnt(0)'); e.lg.clear()
    e.raw(f'.globl {NAME1}\n.p2align 8\n.type {NAME1},@function\n{NAME1}:')
    I('s_cmp_ge_u32 s2, 256'); I('s_cbranch_scc1 K1_END')
    I('s_load_dwordx4 s[24:27], s[0:1], 0')
    I('s_load_dwordx4 s[28:31], s[0:1], 16')
    I('s_load_dwordx2 s[32:33], s[0:1], 56')
    I('s_load_dwordx2 s[56:57], s[0:1], 32')
    ts()
    I('v_lshrrev_b32 v1, 6, v0'); I('v_and_b32 v2, 63, v0')
    I('v_readfirstlane_b32 s34, v1')
    I('s_and_b32 s35, s2, 7'); I('s_lshr_b32 s36, s2, 3')
    I('s_lshr_b32 s37, s35, 1')
    I('s_and_b32 s38, s35, 1'); I('s_lshl_b32 s38, s38, 2'); I('s_lshr_b32 s39, s36, 3'); I('s_add_u32 s38, s38, s39')
    I('s_and_b32 s39, s36, 7'); I('s_lshl_b32 s40, s37, 3'); I('s_add_u32 s39, s39, s40')
    vWQoff,vXoff,vWQrd,vXrd,vg,vq=64,65,66,68,72,73
    I(f'v_lshrrev_b32 v{vg}, 4, v2'); I(f'v_and_b32 v{vq}, 15, v2')
    I('s_and_b32 s40, s34, 1'); I(f's_mul_i32 s42, s34, {RG}')
    I('s_lshl_b32 s41, s40, 3'); I(f'v_lshlrev_b32 v3, 1, v{vg}'); I(f'v_xor_b32 v3, v3, v{vq}')
    I('v_xor_b32 v4, s41, v3'); I('v_lshlrev_b32 v4, 4, v4'); I(f'v_lshl_add_u32 v4, v{vg}, 13, v4')
    I('s_lshl_b32 s41, s34, 16'); I(f'v_add_u32 v{vWQoff}, s41, v4')
    I('s_lshl_b32 s41, s34, 3'); I('v_lshrrev_b32 v5, 3, v2')
    I('v_add_u32 v7, s41, v5'); I('v_bfe_u32 v8, v7, 1, 3'); I('v_and_b32 v9, 7, v2'); I('v_xor_b32 v8, v8, v9')
    I('v_lshlrev_b32 v8, 4, v8'); I(f'v_lshl_add_u32 v{vXoff}, v7, 11, v8')
    e.raw('    s_waitcnt lgkmcnt(0)'); e.lg.clear()
    I('s_mul_i32 s45, s38, 98304'); I('s_add_u32 s4, s24, s45'); I('s_addc_u32 s5, s25, 0'); I('s_mov_b32 s6, 98304'); I('s_mov_b32 s7, 0x20000')
    I('s_lshl_b32 s45, s39, 8'); I('s_add_u32 s8, s30, s45'); I('s_addc_u32 s9, s31, 0'); I('s_sub_u32 s10, 0x800000, s45'); I('s_mov_b32 s11, 0x20000')
    def dma_chunk(c):
        base=((c+2)%6)*QS
        I(f's_add_u32 m0, s42, {base}'); I(f's_mov_b32 s47, {c*524288}')
        I(f'buffer_load_dwordx4 v{vWQoff}, s[8:11], s47 offen lds',('c',c))
        I(f's_add_u32 m0, s42, {base+1024}'); I(f's_mov_b32 s48, {c*524288+32768}')
        I(f'buffer_load_dwordx4 v{vWQoff}, s[8:11], s48 offen lds',('c',c))
        I(f's_add_u32 m0, s42, {base+2048}'); I(f's_mov_b32 s49, {c*128}')
        I(f'buffer_load_dwordx4 v{vXoff}, s[4:7], s49 offen lds',('c',c))
    for c in range(5): dma_chunk(c)
    I('s_lshl_b32 s45, s38, 2'); I('s_add_u32 s45, s45, s37'); I('s_lshl_b32 s45, s45, 19'); I('s_lshl_b32 s46, s34, 16'); I('s_add_u32 s45, s45, s46')
    I('s_add_u32 s12, s26, s45'); I('s_addc_u32 s13, s27, 0'); I('s_mov_b32 s14, 65536'); I('s_mov_b32 s15, 0x20000')
    I('s_add_u32 s16, s28, s45'); I('s_addc_u32 s17, s29, 0'); I('s_mov_b32 s18, 65536'); I('s_mov_b32 s19, 0x20000')
    I('s_lshl_b32 s45, s38, 5'); I('s_add_u32 s45, s45, s39'); I('s_mul_i32 s45, s45, 12288')
    I('s_add_u32 s20, s32, s45'); I('s_addc_u32 s21, s33, 0'); I('s_mov_b32 s22, 12288'); I('s_mov_b32 s23, 0x20000')
    I('s_lshr_b32 s58, s2, 1'); I('s_and_b32 s59, s2, 1')
    I('s_lshl_b32 s45, s58, 16'); I('s_lshl_b32 s46, s59, 10'); I('s_lshl_b32 s47, s34, 7'); I('s_add_u32 s46, s46, s47'); I('s_add_u32 s45, s45, s46')
    I('s_add_u32 s24, s56, s45'); I('s_addc_u32 s25, s57, 0'); I('s_sub_u32 s26, 65536, s46'); I('s_mov_b32 s27, 0x20000')
    I('s_lshl_b32 s45, s59, 3'); I('s_add_u32 s45, s45, s34'); I('s_lshl_b32 s45, s45, 8'); I('s_add_u32 s45, s45, s58'); I('s_lshl_b32 s45, s45, 11'); I(f's_add_u32 s45, s45, {WT}')
    I('s_add_u32 s28, s32, s45'); I('s_addc_u32 s29, s33, 0'); I('s_mov_b32 s30, 264192'); I('s_mov_b32 s31, 0x20000')
    I('v_lshlrev_b32 v4, 4, v3'); I(f'v_lshl_add_u32 v{DM(0)}, v{vg}, 8, v4')
    I(f'v_xor_b32 v{DM(1)}, 128, v{DM(0)}'); I(f'v_xor_b32 v{DM(2)}, 16, v{DM(0)}'); I(f'v_xor_b32 v{DM(3)}, 144, v{DM(0)}')
    I(f'v_lshlrev_b32 v4, 1, v{vg}'); I('v_xor_b32 v4, v4, v9'); I('v_lshlrev_b32 v4, 4, v4'); I(f'v_lshl_add_u32 v{vWO}, v5, 11, v4')
    I(f'v_lshrrev_b32 v10, 2, v{vq}'); I(f'v_and_b32 v11, 3, v{vq}'); I(f'v_and_b32 v12, 1, v{vg}'); I('v_lshl_add_u32 v12, v12, 2, v10')
    I('v_xor_b32 v4, s34, v12'); I('v_lshlrev_b32 v4, 5, v4'); I('v_lshl_add_u32 v4, v10, 8, v4'); I('v_lshl_add_u32 v4, v11, 3, v4')
    I(f'v_mul_u32_u24 v6, {RG}, v{vg}'); I(f'v_add_u32 v{vWQrd}, v4, v6'); I(f'v_add_u32 v{vWQrd+1}, {4*RG}, v{vWQrd}')
    I(f'v_lshrrev_b32 v4, 1, v{vq}'); I(f'v_xor_b32 v4, v4, v{vg}'); I('v_lshlrev_b32 v4, 4, v4'); I(f'v_and_b32 v6, 7, v{vq}'); I('v_lshl_add_u32 v4, v6, 7, v4')
    I(f'v_lshrrev_b32 v7, 3, v{vq}'); I(f'v_mul_u32_u24 v8, {RG}, v7'); I(f'v_add_u32 v{vXrd}, v4, v8'); I(f'v_xor_b32 v{vXrd+1}, 64, v{vXrd}')
    I(f'v_add_u32 v{vXrd+2}, {4*RG}, v{vXrd}'); I(f'v_add_u32 v{vXrd+3}, {4*RG}, v{vXrd+1}')
    I('v_lshl_add_u32 v4, v6, 1, v7'); I(f'v_lshlrev_b32 v8, 2, v{vg}'); I('v_xor_b32 v4, v4, v8'); I('v_lshlrev_b32 v4, 4, v4')
    I(f'v_lshl_add_u32 v4, v{vq}, 8, v4'); I(f'v_add_u32 v{KA(0)}, s42, v4')
    for ks in range(1,4): I(f'v_xor_b32 v{KA(ks)}, {ks*16}, v{KA(0)}')
    I(f'v_lshrrev_b32 v4, 1, v{vg}'); I('v_lshl_add_u32 v4, v12, 1, v4'); I('v_lshrrev_b32 v6, 1, v11'); I('v_xor_b32 v4, v4, v6'); I('v_lshlrev_b32 v4, 4, v4')
    I('v_and_b32 v6, 1, v11'); I('v_lshl_add_u32 v4, v6, 3, v4'); I('v_add_u32 v8, v8, v10'); I('v_lshl_add_u32 v4, v8, 8, v4'); I(f'v_add_u32 v{VA(0)}, s42, v4')
    for dt in range(1,8): I(f'v_xor_b32 v{VA(dt)}, {dt*32}, v{VA(0)}')
    I(f'v_lshrrev_b32 v4, 1, v{vg}'); I(f'v_mul_u32_u24 v4, 768, v4'); I(f'v_lshl_add_u32 v4, v{vq}, 4, v4'); I(f'v_and_b32 v6, 1, v{vg}'); I('v_lshl_add_u32 v4, v6, 3, v4')
    I('v_add_u32 v74, s42, v4'); I(f'v_mul_u32_u24 v4, {2*RG}, v{vg}'); I(f'v_lshl_add_u32 v75, v{vq}, 4, v4')
    for r in range(4): I(f'v_mov_b32 v{ONES+r}, 0x3f803f80')
    I(f's_mov_b32 s52, {hex(f2u(math.log2(math.e)/math.sqrt(128)))}')
    I(f's_mov_b32 s53, {hex(f2u(cfg.get("T",16.0)))}')
    for r in list(range(32,64))+list(range(76,108)): I(f'v_mov_b32 v{r}, 0')
    seq=[]
    for t in range(8):
        seq+=[('K',t,0),('K',t,1)]
        if t==7: seq.append(('W',0,0))
        seq+=[('V',t,0),('V',t,1)]
    slot={g:(n%5)*4096 for n,g in enumerate(seq)}
    nxt=[0]
    def issue():
        n=nxt[0]; nxt[0]+=1
        if n>=len(seq): return
        g=seq[n]; k,t,hf=g
        if k=='W':
            for i in range(4):
                I(f's_add_u32 m0, s42, {slot[g]+i*1024}'); I(f's_mov_b32 s51, {i*16384}')
                I(f'buffer_load_dwordx4 v{vWO}, s[24:27], s51 offen lds',g)
            return
        I(f's_add_u32 m0, s42, {slot[g]}'); I(f's_mov_b32 s51, {t*8192+hf*4096}')
        for i in range(4):
            I(f'buffer_load_dwordx4 v{DM(i)}, s[{12 if k=="K" else 16}:{15 if k=="K" else 19}], s51 offen offset:{i*1024} lds',g)
    QA=lambda j: S(0,j)
    for c in range(16):
        base=((c+2)%6)*QS
        e.wait(vm=[('c',c)]); e.barrier()
        if c in(0,8): ts()
        for ks in range(2):
            for t in range(2): I(f'ds_read_b64_tr_b16 {vr(ks*16+2*t,2)}, v{vWQrd+ks} offset:{base+t*1024}',('a',ks))
            for j in range(3): I(f'ds_read_b128 {vr(ks*16+4+4*j)}, v{vXrd+ks+(2 if j==2 else 0)} offset:{base+2048+(2*RG if j==1 else 0)}',('b',ks,j))
        if c+5<16: dma_chunk(c+5)
        if c in(12,13,14): issue()
        for ks in range(2):
            for j in range(3):
                e.wait(lg=[('a',ks),('b',ks,j)])
                I(f'v_mfma_f32_16x16x32_bf16 {vr(QA(j))}, {vr(ks*16)}, {vr(ks*16+4+4*j)}, '+('0' if c==0 and ks==0 else vr(QA(j))))
    for j in range(3):
        for r in range(4): I(f'v_mul_f32 v{QA(j)+r}, s52, v{QA(j)+r}')
        I(f'v_cvt_pk_bf16_f32 v{QA(j)}, v{QA(j)}, v{QA(j)+1}'); I(f'v_cvt_pk_bf16_f32 v{QA(j)+1}, v{QA(j)+2}, v{QA(j)+3}')
        I(f'ds_write_b64 v74, {vr(QA(j),2)} offset:{QOFF+j*256}','qw')
    e.wait(lg='all'); e.barrier()
    ts()
    for ks in range(4):
        for j in range(3): I(f'ds_read_b128 {vr(Q(j,ks))}, v75 offset:{QOFF+(ks>>1)*RG+(ks&1)*768+j*256}',('q',ks))
    issue()
    def kread(tile,hf,ks): I(f'ds_read_b128 {vr(KB(ks))}, v{KA(ks)} offset:{slot[("K",tile,hf)]}',('kf',tile,hf,ks))
    for r in list(range(0,32))+list(range(64,74)): I(f'v_mov_b32 v{r}, 0')
    e.wait(lg='all')
    I('v_mov_b32 v74, 0'); I('v_mov_b32 v75, 0')
    e.barrier()
    issue()
    e.wait(vm=[('K',0,0)])
    for ks in range(4): kread(0,0,ks)
    e.wait(lg='all'); issue()
    ts()
    rare=[]
    def rowmax(j,d):
        a,b=S(0,j),S(1,j)
        I(f'v_max3_f32 v{d}, v{a}, v{a+1}, v{a+2}'); I(f'v_max3_f32 v{d}, v{d}, v{a+3}, v{b}')
        I(f'v_max3_f32 v{d}, v{d}, v{b+1}, v{b+2}'); I(f'v_max_f32 v{d}, v{d}, v{b+3}')
        I(f'v_mov_b32 v{T1}, v{d}'); I(f'v_permlane32_swap_b32 v{d}, v{T1}'); I(f'v_max_f32 v{d}, v{d}, v{T1}')
        I(f'v_mov_b32 v{T1}, v{d}'); I(f'v_permlane16_swap_b32 v{d}, v{T1}'); I(f'v_max_f32 v{d}, v{d}, v{T1}')
    for tile in range(8):
        e.c(f'---- tile {tile}')
        for t in range(2):
            for ks in range(4):
                e.wait(lg=[('kf',tile,t,ks)])
                if t==1 and ks==3: issue()
                for j in range(3):
                    cc=vr(S(t,j)) if ks else ('0' if tile==0 else vr(NM(j)))
                    I(f'v_mfma_f32_16x16x32_bf16 {vr(S(t,j))}, {vr(KB(ks))}, {vr(Q(j,ks))}, {cc}')
                if t==0:
                    if ks==0: e.wait(vm=[('K',tile,1)])
                    kread(tile,1,ks)
        def vread(t):
            e.wait(vm=[('V',tile,t)])
            for dt in range(8): I(f'ds_read_b64_tr_b16 {vr(VF(dt)+2*t,2)}, v{VA(dt)} offset:{slot[("V",tile,t)]}',('vf',t,dt))
        vread(0)
        if tile==0:
            for j in range(3):
                rowmax(j,T0)
                for t in range(2):
                    for r in range(4): I(f'v_sub_f32 v{S(t,j)+r}, v{S(t,j)+r}, v{T0}')
                for r in range(4): I(f'v_sub_f32 v{NM(j)+r}, 0, v{T0}')
        else:
            regs=[S(t,j)+r for t in range(2) for j in range(3) for r in range(4)]
            I(f'v_max3_f32 v{T0}, v{regs[0]}, v{regs[1]}, v{regs[2]}')
            I(f'v_max3_f32 v{T1}, v{regs[3]}, v{regs[4]}, v{regs[5]}')
            for k in range(6,24,4):
                I(f'v_max3_f32 v{T0}, v{T0}, v{regs[k]}, v{regs[k+1]}')
                if k+3<24: I(f'v_max3_f32 v{T1}, v{T1}, v{regs[k+2]}, v{regs[k+3]}')
            I(f'v_max_f32 v{T0}, v{T0}, v{T1}')
            I(f'v_cmp_lt_f32 vcc, s53, v{T0}')
            I(f's_cbranch_vccnz K1_RARE{tile}')
            e.label(f'K1_BACK{tile}'); rare.append(tile)
        for j in range(3):
            for t in range(2):
                for r in range(4): I(f'v_exp_f32 v{S(t,j)+r}, v{S(t,j)+r}')
            a,b=S(0,j),S(1,j)
            I(f'v_cvt_pk_bf16_f32 v{a}, v{a}, v{a+1}'); I(f'v_cvt_pk_bf16_f32 v{a+1}, v{a+2}, v{a+3}')
            I(f'v_cvt_pk_bf16_f32 v{a+2}, v{b}, v{b+1}'); I(f'v_cvt_pk_bf16_f32 v{a+3}, v{b+2}, v{b+3}')
            if j==0:
                e.wait(lg='all'); issue(); vread(1)
        for j in range(3): I(f'v_mfma_f32_16x16x32_bf16 {vr(L(j))}, {vr(ONES)}, {vr(S(0,j))}, {vr(L(j))}')
        e.wait(lg='all'); issue()
        for dt in range(8):
            for j in range(3): I(f'v_mfma_f32_16x16x32_bf16 {vr(O(dt,j))}, {vr(VF(dt))}, {vr(S(0,j))}, {vr(O(dt,j))}')
            if tile<7:
                if dt==cfg.get('kpre',3):
                    e.wait(vm=[('K',tile+1,0)])
                    for ks in range(4): kread(tile+1,0,ks)
                if dt==cfg.get('kpre',3)+3:
                    e.wait(lg='all'); issue()
        if tile in(0,3,7): ts()
    e.c('epilogue')
    ln,q_,g_=S(0,0),S(0,0)+2,S(0,0)+1
    A0,A1,A2,A3=S(0,1),S(0,1)+1,S(0,1)+2,S(0,1)+3
    I(f'v_mbcnt_lo_u32_b32 v{ln}, -1, 0'); I(f'v_mbcnt_hi_u32_b32 v{ln}, -1, v{ln}')
    I(f'v_and_b32 v{q_}, 15, v{ln}')
    I(f'v_lshlrev_b32 v{A1}, 3, v{q_}'); I(f'v_add_u32 v{A0}, s42, v{A1}'); I(f'v_add_u32 v{A2}, {3*RG}, v{A1}'); I(f'v_add_u32 v{A3}, {6*RG}, v{A1}')
    for j in range(3):
        I(f'v_mov_b32 v{NM(j)+1}, v{L(j)}')
        I(f'ds_write_b64 v{A0}, {vr(NM(j),2)} offset:{MLB+j*128}','ml')
    e.wait(lg='all'); e.barrier()
    ML=lambda j,w: Q(0,0)+(j*8+w)*2
    for j in range(3):
        for w in range(8): I(f'ds_read_b64 {vr(ML(j,w),2)}, v{A1+w//3} offset:{(w%3)*RG+MLB+j*128}',('ml',j))
    SC=lambda j: KB(0)+j
    for j in range(3):
        e.wait(lg=[('ml',j)])
        mn=KB(1)+j
        I(f'v_min3_f32 v{mn}, v{ML(j,0)}, v{ML(j,1)}, v{ML(j,2)}'); I(f'v_min3_f32 v{mn}, v{mn}, v{ML(j,3)}, v{ML(j,4)}')
        I(f'v_min3_f32 v{mn}, v{mn}, v{ML(j,5)}, v{ML(j,6)}'); I(f'v_min_f32 v{mn}, v{mn}, v{ML(j,7)}')
        for w in range(8): I(f'v_sub_f32 v{ML(j,w)}, v{mn}, v{ML(j,w)}')
        I(f'v_sub_f32 v{SC(j)}, v{mn}, v{NM(j)}')
        for w in range(8): I(f'v_exp_f32 v{ML(j,w)}, v{ML(j,w)}')
        I(f'v_exp_f32 v{SC(j)}, v{SC(j)}')
        lt=KB(2)+j
        I(f'v_mul_f32 v{lt}, v{ML(j,0)}, v{ML(j,0)+1}')
        for w in range(1,8): I(f'v_fmac_f32 v{lt}, v{ML(j,w)}, v{ML(j,w)+1}')
        I(f'v_rcp_f32 v{lt}, v{lt}'); I(f'v_mul_f32 v{SC(j)}, v{SC(j)}, v{lt}')
    I(f'v_lshlrev_b32 v{A1}, 3, v{ln}'); I(f'v_add_u32 v{A0}, s42, v{A1}')
    for dt in range(8):
        for j in range(3):
            o=O(dt,j)
            for r in range(4): I(f'v_mul_f32 v{o+r}, v{SC(j)}, v{o+r}')
            I(f'v_cvt_pk_bf16_f32 v{o}, v{o}, v{o+1}'); I(f'v_cvt_pk_bf16_f32 v{o+1}, v{o+2}, v{o+3}')
            I(f'ds_write_b64 v{A0}, {vr(o,2)} offset:{PB+(dt*3+j)*512}','pw')
    I('s_mul_i32 s45, s34, 1536'); I(f'v_add_u32 v{A1}, s45, v{A1}'); I(f'v_add_u32 v{A2}, {3*RG}, v{A1}'); I(f'v_add_u32 v{A3}, {6*RG}, v{A1}')
    I('s_mov_b32 s54, 0x3f80'); I('s_mov_b32 s55, 0x3f800000')
    I('s_lshr_b32 s45, s34, 1'); I('s_mul_i32 s45, s45, 3072'); I('s_lshl_b32 s46, s40, 3'); I('s_add_u32 s45, s45, s46')
    OA=S(0,2); LA=S(0,2)+1
    I(f'v_lshlrev_b32 v{LA}, 4, v{ln}'); I(f'v_add_u32 v{OA}, s45, v{LA}')
    WA=S(1,0); t1,t2=S(1,1),S(1,1)+1
    I(f'v_lshrrev_b32 v{t1}, 2, v{ln}')
    I(f'v_bfe_u32 v{t2}, v{ln}, 3, 2'); I(f'v_lshlrev_b32 v{t2}, 5, v{t2}'); I(f'v_lshl_add_u32 v{t2}, v{t1}, 7, v{t2}')
    I(f'v_and_b32 v{t1}, 3, v{ln}'); I(f'v_lshl_add_u32 v{t2}, v{t1}, 3, v{t2}'); I(f'v_add_u32 v{WA}, s42, v{t2}')
    for v in range(1,4): I(f'v_xor_b32 v{WA+v}, {v*32}, v{WA}')
    WF=lambda v: 212+4*v
    for v in range(4):
        for t in range(2): I(f'ds_read_b64_tr_b16 {vr(WF(v)+2*t,2)}, v{WA+v} offset:{slot[("W",0,0)]+t*2048}',('wf',v))
    e.wait(lg='pw')
    for r in range(12): I(f'v_mov_b32 v{48+r}, 0')
    e.barrier()
    ts()
    I('s_mov_b32 s51, 262144')
    for v in range(4):
        e.wait(lg=[('wf',v)])
        I(f'buffer_store_dwordx4 {vr(WF(v))}, v{LA}, s[28:31], {"s51" if v>>1 else "0"} offen offset:{(v&1)*1024}')
    for j in range(3):
        for w in range(8): I(f'ds_read_b64 {vr((j*8+w)*2,2)}, v{A1+w//3} offset:{(w%3)*RG+PB+j*512}',('pr',j,w))
    for j in range(3):
        for w in range(8):
            e.wait(lg=[('pr',j,w)])
            p=(j*8+w)*2; a=48+4*j
            I(f'v_dot2c_f32_bf16 v{a}, s54, v{p}'); I(f'v_dot2c_f32_bf16 v{a+1}, s55, v{p}')
            I(f'v_dot2c_f32_bf16 v{a+2}, s54, v{p+1}'); I(f'v_dot2c_f32_bf16 v{a+3}, s55, v{p+1}')
        a=48+4*j
        I(f'v_cvt_pk_bf16_f32 v{60+2*j}, v{a}, v{a+1}'); I(f'v_cvt_pk_bf16_f32 v{61+2*j}, v{a+2}, v{a+3}')
        I(f'buffer_store_dwordx2 {vr(60+2*j,2)}, v{OA}, s[20:23], 0 offen offset:{j*1024}')
    if TS:
        ts(); e.raw('    s_waitcnt lgkmcnt(0)')
        I('s_lshl_b32 s45, s2, 3'); I('s_add_u32 s45, s45, s34'); I('s_lshl_b32 s45, s45, 7'); I(f's_add_u32 s45, s45, {16<<20}')
        I('s_add_u32 s20, s32, s45'); I('s_addc_u32 s21, s33, 0'); I('s_mov_b32 s22, 128')
        I('v_mov_b32 v2, 0')
        for k in range(tsn[0]):
            I(f'v_mov_b32 v0, s{64+2*k}'); I(f'v_mov_b32 v1, s{65+2*k}'); I(f'buffer_store_dwordx2 v[0:1], v2, s[20:23], 0 offen offset:{8*k}'); e.nop(2)
    e.label('K1_END'); e.raw('    s_endpgm')
    for tile in rare:
        e.label(f'K1_RARE{tile}'); e.nop(8)
        for j in range(3):
            rowmax(j,T0)
            I(f'v_max_f32 v{T0}, 0, v{T0}')
            I(f'v_exp_f32 v{T2}, -v{T0}')
            for t in range(2):
                for r in range(4): I(f'v_sub_f32 v{S(t,j)+r}, v{S(t,j)+r}, v{T0}')
            for r in range(4): I(f'v_sub_f32 v{NM(j)+r}, v{NM(j)+r}, v{T0}')
            for r in range(4): I(f'v_mul_f32 v{L(j)+r}, v{T2}, v{L(j)+r}')
            for dt in range(8):
                for r in range(4): I(f'v_mul_f32 v{O(dt,j)+r}, v{T2}, v{O(dt,j)+r}')
        e.nop(2); I(f's_branch K1_BACK{tile}')
    return e.text()
```

```python
from emit import Em, vr
NAME2='gqa_oproj_kernel'
ACC=lambda v,j: (v*3+j)*4
WT=4<<20
def gen(cfg):
    R=cfg.get('k2ring',11)
    F=lambda s,k: 32+((s%R)*5+k)*4
    vO=24
    e=Em(); I=e.i
    TS=cfg.get('ts',0); tsn=[0]
    def ts():
        if not TS: return
        k=tsn[0]; tsn[0]+=1
        e.raw(f'    s_memtime s[{64+2*k}:{65+2*k}]'); e.raw('    s_waitcnt lgkmcnt(0)'); e.lg.clear()
    e.raw(f'.globl {NAME2}\n.p2align 8\n.type {NAME2},@function\n{NAME2}:')
    I('s_cmp_ge_u32 s2, 256'); I('s_cbranch_scc1 K2_END')
    I('s_load_dwordx2 s[26:27], s[0:1], 40')
    I('s_load_dwordx2 s[28:29], s[0:1], 56')
    ts()
    I('v_lshrrev_b32 v1, 6, v0'); I('v_and_b32 v2, 63, v0')
    I('v_readfirstlane_b32 s34, v1')
    I('s_and_b32 s35, s2, 7'); I('s_lshr_b32 s36, s2, 3')
    I('s_and_b32 s38, s35, 1'); I('s_lshl_b32 s38, s38, 2'); I('s_lshr_b32 s39, s36, 3'); I('s_add_u32 s38, s38, s39')
    I('s_lshr_b32 s37, s35, 1'); I('s_lshl_b32 s37, s37, 3'); I('s_and_b32 s39, s36, 7'); I('s_add_u32 s39, s39, s37')
    I(f'v_lshlrev_b32 v{vO}, 4, v2')
    I('s_lshl_b32 s45, s39, 3'); I('s_add_u32 s45, s45, s34'); I('s_lshl_b32 s45, s45, 15'); I(f's_add_u32 s45, s45, {WT}')
    I('s_lshl_b32 s44, s38, 3'); I('s_add_u32 s44, s44, s34'); I('s_mul_i32 s44, s44, 49152')
    e.raw('    s_waitcnt lgkmcnt(0)')
    I('s_add_u32 s8, s28, s45'); I('s_addc_u32 s9, s29, 0'); I('s_mov_b32 s10, 32768'); I('s_mov_b32 s11, 0x20000')
    I('s_add_u32 s4, s28, s44'); I('s_addc_u32 s5, s29, 0'); I('s_mov_b32 s6, 49152'); I('s_mov_b32 s7, 0x20000')
    def ld(s):
        if s>=16: return
        I(f's_mov_b32 s47, {s*2048}'); I(f's_mov_b32 s48, {s*3072}')
        for v in range(2): I(f'buffer_load_dwordx4 {vr(F(s,v))}, v{vO}, s[8:11], s47 offen offset:{v*1024}',(s,v))
        for j in range(3): I(f'buffer_load_dwordx4 {vr(F(s,2+j))}, v{vO}, s[4:7], s48 offen offset:{j*1024}',(s,2+j))
    for s in range(R): ld(s)
    I('s_mov_b32 s12, s26'); I('s_mov_b32 s13, s27'); I('s_mov_b32 s14, 786432'); I('s_mov_b32 s15, 0x20000')
    I('v_lshrrev_b32 v3, 4, v2'); I('v_and_b32 v4, 15, v2')
    I('s_cmp_ge_u32 s34, 3'); I('s_cselect_b32 s50, 1, 0'); I('s_mul_i32 s51, s50, 3'); I('s_sub_u32 s51, s34, s51')
    I('s_mul_i32 s52, s38, 48'); I('s_lshl_b32 s53, s51, 4'); I('s_add_u32 s52, s52, s53'); I('s_lshl_b32 s52, s52, 11')
    I('s_lshl_b32 s53, s50, 5'); I('s_add_u32 s52, s52, s53'); I('s_lshl_b32 s46, s39, 6'); I('s_add_u32 s52, s52, s46')
    I('v_lshlrev_b32 v25, 11, v4'); I('v_lshl_add_u32 v25, v3, 3, v25'); I('v_add_u32 v25, s52, v25')
    I('s_mul_i32 s42, s34, 6144'); I(f'v_add_u32 v26, s42, v{vO}')
    I('s_lshl_b32 s53, s34, 10'); I(f'v_add_u32 v27, s53, v{vO}')
    for s in range(16):
        for j in range(3):
            for v in range(2):
                e.wait(vm=[(s,v),(s,2+j)])
                I(f'v_mfma_f32_16x16x32_bf16 {vr(ACC(v,j))}, {vr(F(s,v))}, {vr(F(s,2+j))}, '+('0' if s==0 else vr(ACC(v,j))))
        ld(s+R)
        if s in(0,7,15): ts()
    for k in range(6): I(f'ds_write_b128 v26, {vr(4*k)} offset:{k*1024}','pw')
    e.wait(lg='all'); e.barrier()
    I('s_cmp_ge_u32 s34, 6'); I('s_cbranch_scc1 K2_END')
    for w in range(8): I(f'ds_read_b128 {vr(32+4*w)}, v27 offset:{w*6144}',('pr',w))
    for w in range(1,8):
        e.wait(lg=[('pr',w)])
        I(f'v_pk_add_f32 v[32:33], v[32:33], {vr(32+4*w,2)}'); I(f'v_pk_add_f32 v[34:35], v[34:35], {vr(34+4*w,2)}')
    I('v_cvt_pk_bf16_f32 v32, v32, v33'); I('v_cvt_pk_bf16_f32 v33, v34, v35')
    I('buffer_store_dwordx2 v[32:33], v25, s[12:15], 0 offen')
    if TS:
        ts()
        I('s_lshl_b32 s45, s2, 3'); I('s_add_u32 s45, s45, s34'); I('s_lshl_b32 s45, s45, 7'); I(f's_add_u32 s45, s45, {17<<20}')
        I('s_add_u32 s4, s28, s45'); I('s_addc_u32 s5, s29, 0'); I('s_mov_b32 s6, 128')
        I('v_mov_b32 v2, 0')
        for k in range(tsn[0]):
            I(f'v_mov_b32 v0, s{64+2*k}'); I(f'v_mov_b32 v1, s{65+2*k}'); I(f'buffer_store_dwordx2 v[0:1], v2, s[4:7], 0 offen offset:{8*k}'); e.nop(2)
    e.label('K2_END'); e.raw('    s_endpgm')
    return e.text(), 32+R*20, 49152
```

```python
from emit import Em, vr
import struct, math
def f2u(x): return struct.unpack('<I',struct.pack('<f',x))[0]
NAME1='gqa_attn_kernel'
O=lambda dt,j: (dt*3+j)*4
L=lambda j: 96+4*j
Q=lambda j,ks: 108+(j*4+ks)*4
NM=lambda j: 156+4*j
ONES=168
S=lambda t,j: 172+(t*3+j)*4
KB=lambda ks: 196+4*ks
VF=lambda dt: KB(dt) if dt<2 else 212+4*(dt-2)
DM=lambda i: 236+i
KA=lambda ks: 240+ks
VA=lambda dt: 244+dt
T0,T1,T2,vWO=252,253,254,255
RG=20480; QS=3072; QOFF=16384; PB=0; MLB=16384; TR=16384; DUM=48
WT=4<<20
def gen(cfg):
    e=Em(); I=e.i
    TS=cfg.get('ts',0)
    tsn=[0]
    def ts():
        if not TS: return
        k=tsn[0]; tsn[0]+=1
        e.raw(f'    s_memtime s[{64+2*k}:{65+2*k}]')
        e.raw('    s_waitcnt lgkmcnt(0)'); e.lg.clear()
    e.raw(f'.globl {NAME1}\n.p2align 8\n.type {NAME1},@function\n{NAME1}:')
    I('s_cmp_ge_u32 s2, 256'); I('s_cbranch_scc1 K1_END')
    I('s_load_dwordx4 s[24:27], s[0:1], 0')
    I('s_load_dwordx4 s[28:31], s[0:1], 16')
    I('s_load_dwordx2 s[32:33], s[0:1], 56')
    I('s_load_dwordx2 s[56:57], s[0:1], 32')
    ts()
    I('v_lshrrev_b32 v1, 6, v0'); I('v_and_b32 v2, 63, v0')
    I('v_readfirstlane_b32 s34, v1')
    I('s_and_b32 s35, s2, 7'); I('s_lshr_b32 s36, s2, 3')
    I('s_lshr_b32 s37, s35, 1')
    I('s_and_b32 s38, s35, 1'); I('s_lshl_b32 s38, s38, 2'); I('s_lshr_b32 s39, s36, 3'); I('s_add_u32 s38, s38, s39')
    I('s_and_b32 s39, s36, 7'); I('s_lshl_b32 s40, s37, 3'); I('s_add_u32 s39, s39, s40')
    vWQoff,vXoff,vWQrd,vXrd,vg,vq=64,65,66,68,72,73
    I(f'v_lshrrev_b32 v{vg}, 4, v2'); I(f'v_and_b32 v{vq}, 15, v2')
    I('s_and_b32 s40, s34, 1'); I(f's_mul_i32 s42, s34, {RG}')
    I('s_lshl_b32 s41, s40, 3'); I(f'v_lshlrev_b32 v3, 1, v{vg}'); I(f'v_xor_b32 v3, v3, v{vq}')
    I('v_xor_b32 v4, s41, v3'); I('v_lshlrev_b32 v4, 4, v4'); I(f'v_lshl_add_u32 v4, v{vg}, 13, v4')
    I('s_lshl_b32 s41, s34, 16'); I(f'v_add_u32 v{vWQoff}, s41, v4')
    I('s_lshl_b32 s41, s34, 3'); I('v_lshrrev_b32 v5, 3, v2')
    I('v_add_u32 v7, s41, v5'); I('v_bfe_u32 v8, v7, 1, 3'); I('v_and_b32 v9, 7, v2'); I('v_xor_b32 v8, v8, v9')
    I('v_lshlrev_b32 v8, 4, v8'); I(f'v_lshl_add_u32 v{vXoff}, v7, 11, v8')
    e.raw('    s_waitcnt lgkmcnt(0)'); e.lg.clear()
    I('s_mul_i32 s45, s38, 98304'); I('s_add_u32 s4, s24, s45'); I('s_addc_u32 s5, s25, 0'); I('s_mov_b32 s6, 98304'); I('s_mov_b32 s7, 0x20000')
    I('s_lshl_b32 s45, s39, 8'); I('s_add_u32 s8, s30, s45'); I('s_addc_u32 s9, s31, 0'); I('s_sub_u32 s10, 0x800000, s45'); I('s_mov_b32 s11, 0x20000')
    I('s_lshr_b32 s60, s36, 3'); I('s_lshl_b32 s60, s60, 2')
    I('s_and_b32 s61, s36, 7')
    NL=cfg.get('wqlead',4); WC=cfg.get('wqcomp',1); KC=cfg.get('kvcomp',1)
    def dma_chunk(c):
        base=((c+4)%5)*QS; nt=' nt' if c<NL else ''
        I(f's_add_u32 s49, s60, {c}'); I('s_and_b32 s49, s49, 15'); I('s_lshl_b32 s47, s49, 19'); I('s_add_u32 s48, s47, 32768'); I('s_lshl_b32 s49, s49, 7')
        for p in range(2):
            I(f's_add_u32 m0, s42, {base+p*1024}')
            I(f'buffer_load_dwordx4 v{vWQoff}, s[8:11], s{47+p} offen{nt} lds',('c',c))
            if nt and WC: I(f'buffer_load_dwordx4 {vr(DUM)}, v{vWQoff}, s[8:11], s{47+p} offen',('c',c))
        I(f's_add_u32 m0, s42, {base+2048}')
        I(f'buffer_load_dwordx4 v{vXoff}, s[4:7], s49 offen lds',('c',c))
    for c in range(4): dma_chunk(c)
    I('s_lshl_b32 s45, s38, 2'); I('s_add_u32 s45, s45, s37'); I('s_lshl_b32 s45, s45, 19'); I('s_lshl_b32 s46, s34, 16'); I('s_add_u32 s45, s45, s46')
    I('s_add_u32 s12, s26, s45'); I('s_addc_u32 s13, s27, 0'); I('s_mov_b32 s14, 65536'); I('s_mov_b32 s15, 0x20000')
    I('s_add_u32 s16, s28, s45'); I('s_addc_u32 s17, s29, 0'); I('s_mov_b32 s18, 65536'); I('s_mov_b32 s19, 0x20000')
    I('s_lshl_b32 s45, s38, 5'); I('s_add_u32 s45, s45, s39'); I('s_mul_i32 s45, s45, 12288')
    I('s_add_u32 s20, s32, s45'); I('s_addc_u32 s21, s33, 0'); I('s_mov_b32 s22, 12288'); I('s_mov_b32 s23, 0x20000')
    I('s_lshr_b32 s58, s2, 1'); I('s_and_b32 s59, s2, 1')
    I('s_lshl_b32 s45, s58, 16'); I('s_lshl_b32 s46, s59, 10'); I('s_lshl_b32 s44, s34, 7'); I('s_add_u32 s46, s46, s44'); I('s_add_u32 s45, s45, s46')
    I('s_add_u32 s24, s56, s45'); I('s_addc_u32 s25, s57, 0'); I('s_sub_u32 s26, 65536, s46'); I('s_mov_b32 s27, 0x20000')
    I('s_lshl_b32 s45, s59, 3'); I('s_add_u32 s45, s45, s34'); I('s_lshl_b32 s45, s45, 8'); I('s_add_u32 s45, s45, s58'); I('s_lshl_b32 s45, s45, 11'); I(f's_add_u32 s45, s45, {WT}')
    I('s_add_u32 s28, s32, s45'); I('s_addc_u32 s29, s33, 0'); I('s_mov_b32 s30, 264192'); I('s_mov_b32 s31, 0x20000')
    I('v_lshlrev_b32 v4, 4, v3'); I(f'v_lshl_add_u32 v{DM(0)}, v{vg}, 8, v4')
    I(f'v_xor_b32 v{DM(1)}, 128, v{DM(0)}'); I(f'v_xor_b32 v{DM(2)}, 16, v{DM(0)}'); I(f'v_xor_b32 v{DM(3)}, 144, v{DM(0)}')
    I(f'v_lshlrev_b32 v4, 1, v{vg}'); I('v_xor_b32 v4, v4, v9'); I('v_lshlrev_b32 v4, 4, v4'); I(f'v_lshl_add_u32 v{vWO}, v5, 11, v4')
    for i in range(4):
        I(f's_add_u32 m0, s42, {TR+i*1024}'); I(f's_mov_b32 s51, {i*16384}')
        I(f'buffer_load_dwordx4 v{vWO}, s[24:27], s51 offen nt lds','W')
    STG=[KB(0),32,108,124]
    I('s_lshl_b32 s62, s61, 13'); I('s_add_u32 s63, s62, 4096')
    stn=[0]
    def stage(k):
        for _ in range(k):
            n=stn[0]; stn[0]+=1
            if n>=16: return
            g,i=n//4,n%4; srd='s[12:15]' if g<2 else 's[16:19]'
            I(f'buffer_load_dwordx4 {vr(STG[g]+4*i)}, v{DM(i)}, {srd}, s{62+(g&1)} offen offset:{i*1024} nt',('st',g))
            if KC: I(f'buffer_load_dwordx4 {vr(DUM)}, v{DM(i)}, {srd}, s{62+(g&1)} offen offset:{i*1024}',('st',g))
    stage(cfg.get('st0',4))
    I(f'v_lshrrev_b32 v10, 2, v{vq}'); I(f'v_and_b32 v11, 3, v{vq}'); I(f'v_and_b32 v12, 1, v{vg}'); I('v_lshl_add_u32 v12, v12, 2, v10')
    I('v_xor_b32 v4, s34, v12'); I('v_lshlrev_b32 v4, 5, v4'); I('v_lshl_add_u32 v4, v10, 8, v4'); I('v_lshl_add_u32 v4, v11, 3, v4')
    I(f'v_mul_u32_u24 v6, {RG}, v{vg}'); I(f'v_add_u32 v{vWQrd}, v4, v6'); I(f'v_add_u32 v{vWQrd+1}, {4*RG}, v{vWQrd}')
    I(f'v_lshrrev_b32 v4, 1, v{vq}'); I(f'v_xor_b32 v4, v4, v{vg}'); I('v_lshlrev_b32 v4, 4, v4'); I(f'v_and_b32 v6, 7, v{vq}'); I('v_lshl_add_u32 v4, v6, 7, v4')
    I(f'v_lshrrev_b32 v7, 3, v{vq}'); I(f'v_mul_u32_u24 v8, {RG}, v7'); I(f'v_add_u32 v{vXrd}, v4, v8'); I(f'v_xor_b32 v{vXrd+1}, 64, v{vXrd}')
    I(f'v_add_u32 v{vXrd+2}, {4*RG}, v{vXrd}'); I(f'v_add_u32 v{vXrd+3}, {4*RG}, v{vXrd+1}')
    I('v_lshl_add_u32 v4, v6, 1, v7'); I(f'v_lshlrev_b32 v8, 2, v{vg}'); I('v_xor_b32 v4, v4, v8'); I('v_lshlrev_b32 v4, 4, v4')
    I(f'v_lshl_add_u32 v4, v{vq}, 8, v4'); I(f'v_add_u32 v{KA(0)}, s42, v4')
    for ks in range(1,4): I(f'v_xor_b32 v{KA(ks)}, {ks*16}, v{KA(0)}')
    I(f'v_lshrrev_b32 v4, 1, v{vg}'); I('v_lshl_add_u32 v4, v12, 1, v4'); I('v_lshrrev_b32 v6, 1, v11'); I('v_xor_b32 v4, v4, v6'); I('v_lshlrev_b32 v4, 4, v4')
    I('v_and_b32 v6, 1, v11'); I('v_lshl_add_u32 v4, v6, 3, v4'); I('v_add_u32 v8, v8, v10'); I('v_lshl_add_u32 v4, v8, 8, v4'); I(f'v_add_u32 v{VA(0)}, s42, v4')
    for dt in range(1,8): I(f'v_xor_b32 v{VA(dt)}, {dt*32}, v{VA(0)}')
    I(f'v_lshrrev_b32 v4, 1, v{vg}'); I(f'v_mul_u32_u24 v4, 768, v4'); I(f'v_lshl_add_u32 v4, v{vq}, 4, v4'); I(f'v_and_b32 v6, 1, v{vg}'); I('v_lshl_add_u32 v4, v6, 3, v4')
    I('v_add_u32 v74, s42, v4'); I(f'v_mul_u32_u24 v4, {2*RG}, v{vg}'); I(f'v_lshl_add_u32 v75, v{vq}, 4, v4')
    for r in range(4): I(f'v_mov_b32 v{ONES+r}, 0x3f803f80')
    I(f's_mov_b32 s52, {hex(f2u(math.log2(math.e)/math.sqrt(128)))}')
    I(f's_mov_b32 s53, {hex(f2u(cfg.get("T",16.0)))}')
    I('v_lshlrev_b32 v77, 4, v2'); I('v_add_u32 v76, s42, v77')
    I('v_lshrrev_b32 v4, 2, v2'); I('v_bfe_u32 v6, v2, 3, 2'); I('v_lshlrev_b32 v6, 5, v6'); I('v_lshl_add_u32 v6, v4, 7, v6')
    I('v_lshl_add_u32 v6, v11, 3, v6'); I('v_add_u32 v78, s42, v6')
    for v in range(1,4): I(f'v_xor_b32 v{78+v}, {v*32}, v78')
    seq=[(k,t,h) for t in range(1,8) for k in 'KV' for h in range(2)]
    slot={g:(n%5)*4096 for n,g in enumerate(seq)}
    nxt=[0]
    def issue():
        n=nxt[0]; nxt[0]+=1
        if n>=len(seq): return
        g=seq[n]; k,t,hf=g
        I(f's_add_u32 s51, s61, {t}'); I('s_and_b32 s51, s51, 7'); I('s_lshl_b32 s51, s51, 13')
        if hf: I('s_add_u32 s51, s51, 4096')
        I(f's_add_u32 m0, s42, {slot[g]}')
        for i in range(4):
            I(f'buffer_load_dwordx4 v{DM(i)}, s[{12 if k=="K" else 16}:{15 if k=="K" else 19}], s51 offen offset:{i*1024} lds',g)
    VF0=lambda dt: O(7,2-dt) if dt<2 else VF(dt)
    WF=lambda v: 140+4*v
    SF=cfg.get('stflag',' sc1')
    def transit(g):
        if g=='W':
            e.wait(vm='W')
            for v in range(4):
                for t in range(2): I(f'ds_read_b64_tr_b16 {vr(WF(v)+2*t,2)}, v{78+v} offset:{TR+t*2048}',('wf',v))
            I('s_mov_b32 s51, 262144')
            for v in range(4):
                e.wait(lg=[('wf',v)])
                I(f'buffer_store_dwordx4 {vr(WF(v))}, v77, s[28:31], {"s51" if v>>1 else "0"} offen offset:{(v&1)*1024}{SF}','ws')
            return
        e.wait(vm=[('st',g)],lg='all')
        for i in range(4): I(f'ds_write_b128 v76, {vr(STG[g]+4*i)} offset:{TR+i*1024}','tw')
        e.wait(lg='all')
        if g<2:
            for ks in range(4): I(f'ds_read_b128 {vr(STG[g]+4*ks)}, v{KA(ks)} offset:{TR}','tr')
        else:
            for dt in range(8): I(f'ds_read_b64_tr_b16 {vr(VF0(dt)+2*(g-2),2)}, v{VA(dt)} offset:{TR}','tr')
    TRS=dict(zip(cfg.get('trs',[6,9,11,13,15]),['W',0,1,2,3]))
    QA=lambda j: S(0,j)
    for c in range(16):
        base=((c+4)%5)*QS
        e.wait(vm=[('c',c)]); e.barrier()
        if c in(0,8): ts()
        for ks in range(2):
            for t in range(2): I(f'ds_read_b64_tr_b16 {vr(ks*16+2*t,2)}, v{vWQrd+ks} offset:{base+t*1024}',('a',ks))
            for j in range(3): I(f'ds_read_b128 {vr(ks*16+4+4*j)}, v{vXrd+ks+(2 if j==2 else 0)} offset:{base+2048+(2*RG if j==1 else 0)}',('b',ks,j))
        if c+4<16: dma_chunk(c+4)
        stage(cfg.get('stc',2))
        if c in(13,14,15): issue()
        for ks in range(2):
            for j in range(3):
                e.wait(lg=[('a',ks),('b',ks,j)])
                I(f'v_mfma_f32_16x16x32_bf16 {vr(QA(j))}, {vr(ks*16)}, {vr(ks*16+4+4*j)}, '+('0' if c==0 and ks==0 else vr(QA(j))))
        if c in TRS: transit(TRS[c])
    e.wait(lg='all',vm='ws')
    for j in range(3):
        for r in range(4): I(f'v_mul_f32 v{QA(j)+r}, s52, v{QA(j)+r}')
        I(f'v_cvt_pk_bf16_f32 v{QA(j)}, v{QA(j)}, v{QA(j)+1}'); I(f'v_cvt_pk_bf16_f32 v{QA(j)+1}, v{QA(j)+2}, v{QA(j)+3}')
        I(f'ds_write_b64 v74, {vr(QA(j),2)} offset:{QOFF+j*256}','qw')
    e.wait(lg='all'); e.barrier()
    ts()
    for ks in range(4):
        for j in range(3): I(f'ds_read_b128 {vr(Q(j,ks))}, v75 offset:{QOFF+(ks>>1)*RG+(ks&1)*768+j*256}',('q',ks))
    issue()
    def kread(tile,hf,ks): I(f'ds_read_b128 {vr(KB(ks))}, v{KA(ks)} offset:{slot[("K",tile,hf)]}',('kf',tile,hf,ks))
    e.wait(lg='all'); e.barrier()
    issue()
    ts()
    rare=[]
    def rowmax(j,d):
        a,b=S(0,j),S(1,j)
        I(f'v_max3_f32 v{d}, v{a}, v{a+1}, v{a+2}'); I(f'v_max3_f32 v{d}, v{d}, v{a+3}, v{b}')
        I(f'v_max3_f32 v{d}, v{d}, v{b+1}, v{b+2}'); I(f'v_max_f32 v{d}, v{d}, v{b+3}')
        I(f'v_mov_b32 v{T1}, v{d}'); I(f'v_permlane32_swap_b32 v{d}, v{T1}'); I(f'v_max_f32 v{d}, v{d}, v{T1}')
        I(f'v_mov_b32 v{T1}, v{d}'); I(f'v_permlane16_swap_b32 v{d}, v{T1}'); I(f'v_max_f32 v{d}, v{d}, v{T1}')
    for tile in range(8):
        e.c(f'---- tile {tile}')
        for t in range(2):
            for ks in range(4):
                e.wait(lg=[('kf',tile,t,ks)])
                if t==1 and ks==3 and tile: issue()
                kb=STG[t]+4*ks if tile==0 else KB(ks)
                for j in range(3):
                    cc=vr(S(t,j)) if ks else ('0' if tile==0 else vr(NM(j)))
                    I(f'v_mfma_f32_16x16x32_bf16 {vr(S(t,j))}, {vr(kb)}, {vr(Q(j,ks))}, {cc}')
                if t==0 and tile:
                    if ks==0: e.wait(vm=[('K',tile,1)])
                    kread(tile,1,ks)
        def vread(t):
            e.wait(vm=[('V',tile,t)])
            for dt in range(8): I(f'ds_read_b64_tr_b16 {vr(VF(dt)+2*t,2)}, v{VA(dt)} offset:{slot[("V",tile,t)]}',('vf',t,dt))
        if tile: vread(0)
        if tile==0:
            for j in range(3):
                rowmax(j,T0)
                for t in range(2):
                    for r in range(4): I(f'v_sub_f32 v{S(t,j)+r}, v{S(t,j)+r}, v{T0}')
                for r in range(4): I(f'v_sub_f32 v{NM(j)+r}, 0, v{T0}')
        else:
            regs=[S(t,j)+r for t in range(2) for j in range(3) for r in range(4)]
            I(f'v_max3_f32 v{T0}, v{regs[0]}, v{regs[1]}, v{regs[2]}')
            I(f'v_max3_f32 v{T1}, v{regs[3]}, v{regs[4]}, v{regs[5]}')
            for k in range(6,24,4):
                I(f'v_max3_f32 v{T0}, v{T0}, v{regs[k]}, v{regs[k+1]}')
                if k+3<24: I(f'v_max3_f32 v{T1}, v{T1}, v{regs[k+2]}, v{regs[k+3]}')
            I(f'v_max_f32 v{T0}, v{T0}, v{T1}')
            I(f'v_cmp_lt_f32 vcc, s53, v{T0}')
            I(f's_cbranch_vccnz K1_RARE{tile}')
            e.label(f'K1_BACK{tile}'); rare.append(tile)
        for j in range(3):
            for t in range(2):
                for r in range(4): I(f'v_exp_f32 v{S(t,j)+r}, v{S(t,j)+r}')
            a,b=S(0,j),S(1,j)
            I(f'v_cvt_pk_bf16_f32 v{a}, v{a}, v{a+1}'); I(f'v_cvt_pk_bf16_f32 v{a+1}, v{a+2}, v{a+3}')
            I(f'v_cvt_pk_bf16_f32 v{a+2}, v{b}, v{b+1}'); I(f'v_cvt_pk_bf16_f32 v{a+3}, v{b+2}, v{b+3}')
            if j==0 and tile:
                e.wait(lg='all'); issue(); vread(1)
        for j in range(3): I(f'v_mfma_f32_16x16x32_bf16 {vr(L(j))}, {vr(ONES)}, {vr(S(0,j))}, '+(vr(L(j)) if tile else '0'))
        if tile: e.wait(lg='all'); issue()
        for dt in range(8):
            for j in range(3): I(f'v_mfma_f32_16x16x32_bf16 {vr(O(dt,j))}, {vr(VF(dt) if tile else VF0(dt))}, {vr(S(0,j))}, '+(vr(O(dt,j)) if tile else '0'))
            if tile<7:
                if dt==cfg.get('kpre',3):
                    e.wait(vm=[('K',tile+1,0)])
                    for ks in range(4): kread(tile+1,0,ks)
                if dt==cfg.get('kpre',3)+3:
                    e.wait(lg='all'); issue()
        if tile in(0,3,7): ts()
    e.c('epilogue')
    ln,q_,g_=S(0,0),S(0,0)+2,S(0,0)+1
    A0,A1,A2,A3=S(0,1),S(0,1)+1,S(0,1)+2,S(0,1)+3
    I(f'v_mbcnt_lo_u32_b32 v{ln}, -1, 0'); I(f'v_mbcnt_hi_u32_b32 v{ln}, -1, v{ln}')
    I(f'v_and_b32 v{q_}, 15, v{ln}')
    I(f'v_lshlrev_b32 v{A1}, 3, v{q_}'); I(f'v_add_u32 v{A0}, s42, v{A1}'); I(f'v_add_u32 v{A2}, {3*RG}, v{A1}'); I(f'v_add_u32 v{A3}, {6*RG}, v{A1}')
    for j in range(3):
        I(f'v_mov_b32 v{NM(j)+1}, v{L(j)}')
        I(f'ds_write_b64 v{A0}, {vr(NM(j),2)} offset:{MLB+j*128}','ml')
    e.wait(lg='all'); e.barrier()
    ML=lambda j,w: Q(0,0)+(j*8+w)*2
    for j in range(3):
        for w in range(8): I(f'ds_read_b64 {vr(ML(j,w),2)}, v{A1+w//3} offset:{(w%3)*RG+MLB+j*128}',('ml',j))
    SC=lambda j: KB(0)+j
    for j in range(3):
        e.wait(lg=[('ml',j)])
        mn=KB(1)+j
        I(f'v_min3_f32 v{mn}, v{ML(j,0)}, v{ML(j,1)}, v{ML(j,2)}'); I(f'v_min3_f32 v{mn}, v{mn}, v{ML(j,3)}, v{ML(j,4)}')
        I(f'v_min3_f32 v{mn}, v{mn}, v{ML(j,5)}, v{ML(j,6)}'); I(f'v_min_f32 v{mn}, v{mn}, v{ML(j,7)}')
        for w in range(8): I(f'v_sub_f32 v{ML(j,w)}, v{mn}, v{ML(j,w)}')
        I(f'v_sub_f32 v{SC(j)}, v{mn}, v{NM(j)}')
        for w in range(8): I(f'v_exp_f32 v{ML(j,w)}, v{ML(j,w)}')
        I(f'v_exp_f32 v{SC(j)}, v{SC(j)}')
        lt=KB(2)+j
        I(f'v_mul_f32 v{lt}, v{ML(j,0)}, v{ML(j,0)+1}')
        for w in range(1,8): I(f'v_fmac_f32 v{lt}, v{ML(j,w)}, v{ML(j,w)+1}')
        I(f'v_rcp_f32 v{lt}, v{lt}'); I(f'v_mul_f32 v{SC(j)}, v{SC(j)}, v{lt}')
    I(f'v_lshlrev_b32 v{A1}, 4, v{ln}'); I(f'v_add_u32 v{A0}, s42, v{A1}')
    for u in range(4):
        for j in range(3):
            o,p=O(2*u,j),O(2*u+1,j)
            for r in range(4): I(f'v_mul_f32 v{o+r}, v{SC(j)}, v{o+r}')
            for r in range(4): I(f'v_mul_f32 v{p+r}, v{SC(j)}, v{p+r}')
            I(f'v_cvt_pk_bf16_f32 v{o}, v{o}, v{o+1}'); I(f'v_cvt_pk_bf16_f32 v{o+1}, v{o+2}, v{o+3}')
            I(f'v_cvt_pk_bf16_f32 v{o+2}, v{p}, v{p+1}'); I(f'v_cvt_pk_bf16_f32 v{o+3}, v{p+2}, v{p+3}')
            I(f'ds_write_b128 v{A0}, {vr(o)} offset:{PB+(u*3+j)*1024}','pw')
    I('s_lshl_b32 s45, s34, 11'); I(f'v_add_u32 v{A1}, s45, v{A1}'); I(f'v_add_u32 v{A2}, {3*RG}, v{A1}'); I(f'v_add_u32 v{A3}, {6*RG}, v{A1}')
    I('s_mov_b32 s54, 0x3f80'); I('s_mov_b32 s55, 0x3f800000')
    AC=108
    for r in range(16): I(f'v_mov_b32 v{AC+r}, 0')
    e.wait(lg='all'); e.barrier()
    ts()
    I('s_cmp_ge_u32 s34, 6'); I('s_cbranch_scc1 K1_FIN')
    for k in range(2):
        for w in range(8): I(f'ds_read_b128 {vr((k*8+w)*4)}, v{A1+w//3} offset:{(w%3)*RG+PB+k*1024}',('pr',k,w))
    for k in range(2):
        a=AC+8*k
        for w in range(8):
            e.wait(lg=[('pr',k,w)])
            p=(k*8+w)*4
            for r in range(4): I(f'v_dot2c_f32_bf16 v{a+2*r}, s54, v{p+r}'); I(f'v_dot2c_f32_bf16 v{a+2*r+1}, s55, v{p+r}')
        for r in range(4): I(f'v_cvt_pk_bf16_f32 v{124+4*k+r}, v{a+2*r}, v{a+2*r+1}')
        I(f'buffer_store_dwordx4 {vr(124+4*k)}, v{A1}, s[20:23], 0 offen offset:{k*1024}{SF}')
    e.label('K1_FIN')
    if TS:
        ts(); e.raw('    s_waitcnt lgkmcnt(0)')
        I('s_lshl_b32 s45, s2, 3'); I('s_add_u32 s45, s45, s34'); I('s_lshl_b32 s45, s45, 7'); I(f's_add_u32 s45, s45, {16<<20}')
        I('s_add_u32 s20, s32, s45'); I('s_addc_u32 s21, s33, 0'); I('s_mov_b32 s22, 128')
        I('v_mov_b32 v2, 0')
        for k in range(tsn[0]):
            I(f'v_mov_b32 v0, s{64+2*k}'); I(f'v_mov_b32 v1, s{65+2*k}'); I(f'buffer_store_dwordx2 v[0:1], v2, s[20:23], 0 offen offset:{8*k}'); e.nop(2)
    e.label('K1_END'); e.raw('    s_endpgm')
    for tile in rare:
        e.label(f'K1_RARE{tile}'); e.nop(8)
        for j in range(3):
            rowmax(j,T0)
            I(f'v_max_f32 v{T0}, 0, v{T0}')
            I(f'v_exp_f32 v{T2}, -v{T0}')
            for t in range(2):
                for r in range(4): I(f'v_sub_f32 v{S(t,j)+r}, v{S(t,j)+r}, v{T0}')
            for r in range(4): I(f'v_sub_f32 v{NM(j)+r}, v{NM(j)+r}, v{T0}')
            for r in range(4): I(f'v_mul_f32 v{L(j)+r}, v{T2}, v{L(j)+r}')
            for dt in range(8):
                for r in range(4): I(f'v_mul_f32 v{O(dt,j)+r}, v{T2}, v{O(dt,j)+r}')
        e.nop(2); I(f's_branch K1_BACK{tile}')
    return e.text()
```

```python
from emit import Em, vr
import struct, math
def f2u(x): return struct.unpack('<I',struct.pack('<f',x))[0]
NAME1='gqa_attn_kernel'
O=lambda dt,j: (dt*3+j)*4
L=lambda j: 96+4*j
Q=lambda j,ks: 108+(j*4+ks)*4
NM=lambda j: 156+4*j
ONES=168
S=lambda t,j: 172+(t*3+j)*4
KB=lambda ks: 196+4*ks
VF=lambda dt: KB(dt) if dt<2 else 212+4*(dt-2)
DM=lambda i: 236+i
KA=lambda ks: 240+ks
VA=lambda dt: 244+dt
T0,T1,T2,vWO=252,253,254,255
RG=20480; QS=3072; QOFF=18432; PB=4096; MLB=16384
WT=4<<20
def gen(cfg):
    e=Em(); I=e.i
    TS=cfg.get('ts',0)
    F=lambda k: (' '+cfg[k]) if cfg.get(k) else ''
    tsn=[0]
    def ts():
        if not TS: return
        k=tsn[0]; tsn[0]+=1
        e.raw(f'    s_memtime s[{64+2*k}:{65+2*k}]')
        e.raw('    s_waitcnt lgkmcnt(0)'); e.lg.clear()
    e.raw(f'.globl {NAME1}\n.p2align 8\n.type {NAME1},@function\n{NAME1}:')
    I('s_cmp_ge_u32 s2, 256'); I('s_cbranch_scc1 K1_END')
    I('s_load_dwordx4 s[24:27], s[0:1], 0')
    I('s_load_dwordx4 s[28:31], s[0:1], 16')
    I('s_load_dwordx2 s[32:33], s[0:1], 56')
    I('s_load_dwordx2 s[56:57], s[0:1], 32')
    ts()
    I('v_lshrrev_b32 v1, 6, v0'); I('v_and_b32 v2, 63, v0')
    I('v_readfirstlane_b32 s34, v1')
    I('s_and_b32 s35, s2, 7'); I('s_lshr_b32 s36, s2, 3')
    I('s_lshr_b32 s37, s35, 1')
    I('s_and_b32 s38, s35, 1'); I('s_lshl_b32 s38, s38, 2'); I('s_lshr_b32 s39, s36, 3'); I('s_add_u32 s38, s38, s39')
    I('s_and_b32 s39, s36, 7'); I('s_lshl_b32 s40, s37, 3'); I('s_add_u32 s39, s39, s40')
    vWQoff,vXoff,vWQrd,vXrd,vg,vq=64,65,66,68,72,73
    I(f'v_lshrrev_b32 v{vg}, 4, v2'); I(f'v_and_b32 v{vq}, 15, v2')
    I('s_and_b32 s40, s34, 1'); I(f's_mul_i32 s42, s34, {RG}')
    I('s_lshl_b32 s41, s40, 3'); I(f'v_lshlrev_b32 v3, 1, v{vg}'); I(f'v_xor_b32 v3, v3, v{vq}')
    I('v_xor_b32 v4, s41, v3'); I('v_lshlrev_b32 v4, 4, v4'); I(f'v_lshl_add_u32 v4, v{vg}, 13, v4')
    I('s_lshl_b32 s41, s34, 16'); I(f'v_add_u32 v{vWQoff}, s41, v4')
    I('s_lshl_b32 s41, s34, 3'); I('v_lshrrev_b32 v5, 3, v2')
    I('v_add_u32 v7, s41, v5'); I('v_bfe_u32 v8, v7, 1, 3'); I('v_and_b32 v9, 7, v2'); I('v_xor_b32 v8, v8, v9')
    I('v_lshlrev_b32 v8, 4, v8'); I(f'v_lshl_add_u32 v{vXoff}, v7, 11, v8')
    e.raw('    s_waitcnt lgkmcnt(0)'); e.lg.clear()
    I('s_mul_i32 s45, s38, 98304'); I('s_add_u32 s4, s24, s45'); I('s_addc_u32 s5, s25, 0'); I('s_mov_b32 s6, 98304'); I('s_mov_b32 s7, 0x20000')
    I('s_lshl_b32 s45, s39, 8'); I('s_add_u32 s8, s30, s45'); I('s_addc_u32 s9, s31, 0'); I('s_sub_u32 s10, 0x800000, s45'); I('s_mov_b32 s11, 0x20000')
    def dma_chunk(c):
        base=((c+2)%6)*QS
        I(f's_add_u32 m0, s42, {base}'); I(f's_mov_b32 s47, {c*524288}')
        I(f'buffer_load_dwordx4 v{vWQoff}, s[8:11], s47 offen{F('wqf')} lds',('c',c))
        I(f's_add_u32 m0, s42, {base+1024}'); I(f's_mov_b32 s48, {c*524288+32768}')
        I(f'buffer_load_dwordx4 v{vWQoff}, s[8:11], s48 offen{F('wqf')} lds',('c',c))
        I(f's_add_u32 m0, s42, {base+2048}'); I(f's_mov_b32 s49, {c*128}')
        I(f'buffer_load_dwordx4 v{vXoff}, s[4:7], s49 offen lds',('c',c))
    for c in range(5): dma_chunk(c)
    I('s_lshl_b32 s45, s38, 2'); I('s_add_u32 s45, s45, s37'); I('s_lshl_b32 s45, s45, 19'); I('s_lshl_b32 s46, s34, 16'); I('s_add_u32 s45, s45, s46')
    I('s_add_u32 s12, s26, s45'); I('s_addc_u32 s13, s27, 0'); I('s_mov_b32 s14, 65536'); I('s_mov_b32 s15, 0x20000')
    I('s_add_u32 s16, s28, s45'); I('s_addc_u32 s17, s29, 0'); I('s_mov_b32 s18, 65536'); I('s_mov_b32 s19, 0x20000')
    I('s_lshl_b32 s45, s38, 5'); I('s_add_u32 s45, s45, s39'); I('s_mul_i32 s45, s45, 12288')
    I('s_add_u32 s20, s32, s45'); I('s_addc_u32 s21, s33, 0'); I('s_mov_b32 s22, 12288'); I('s_mov_b32 s23, 0x20000')
    I('s_lshr_b32 s58, s2, 1'); I('s_and_b32 s59, s2, 1')
    I('s_lshl_b32 s45, s58, 16'); I('s_lshl_b32 s46, s59, 10'); I('s_lshl_b32 s47, s34, 7'); I('s_add_u32 s46, s46, s47'); I('s_add_u32 s45, s45, s46')
    I('s_add_u32 s24, s56, s45'); I('s_addc_u32 s25, s57, 0'); I('s_sub_u32 s26, 65536, s46'); I('s_mov_b32 s27, 0x20000')
    I('s_lshl_b32 s45, s59, 3'); I('s_add_u32 s45, s45, s34'); I('s_lshl_b32 s45, s45, 8'); I('s_add_u32 s45, s45, s58'); I('s_lshl_b32 s45, s45, 11'); I(f's_add_u32 s45, s45, {WT}')
    I('s_add_u32 s28, s32, s45'); I('s_addc_u32 s29, s33, 0'); I('s_mov_b32 s30, 264192'); I('s_mov_b32 s31, 0x20000')
    I('v_lshlrev_b32 v4, 4, v3'); I(f'v_lshl_add_u32 v{DM(0)}, v{vg}, 8, v4')
    I(f'v_xor_b32 v{DM(1)}, 128, v{DM(0)}'); I(f'v_xor_b32 v{DM(2)}, 16, v{DM(0)}'); I(f'v_xor_b32 v{DM(3)}, 144, v{DM(0)}')
    I(f'v_lshlrev_b32 v4, 1, v{vg}'); I('v_xor_b32 v4, v4, v9'); I('v_lshlrev_b32 v4, 4, v4'); I(f'v_lshl_add_u32 v{vWO}, v5, 11, v4')
    I(f'v_lshrrev_b32 v10, 2, v{vq}'); I(f'v_and_b32 v11, 3, v{vq}'); I(f'v_and_b32 v12, 1, v{vg}'); I('v_lshl_add_u32 v12, v12, 2, v10')
    I('v_xor_b32 v4, s34, v12'); I('v_lshlrev_b32 v4, 5, v4'); I('v_lshl_add_u32 v4, v10, 8, v4'); I('v_lshl_add_u32 v4, v11, 3, v4')
    I(f'v_mul_u32_u24 v6, {RG}, v{vg}'); I(f'v_add_u32 v{vWQrd}, v4, v6'); I(f'v_add_u32 v{vWQrd+1}, {4*RG}, v{vWQrd}')
    I(f'v_lshrrev_b32 v4, 1, v{vq}'); I(f'v_xor_b32 v4, v4, v{vg}'); I('v_lshlrev_b32 v4, 4, v4'); I(f'v_and_b32 v6, 7, v{vq}'); I('v_lshl_add_u32 v4, v6, 7, v4')
    I(f'v_lshrrev_b32 v7, 3, v{vq}'); I(f'v_mul_u32_u24 v8, {RG}, v7'); I(f'v_add_u32 v{vXrd}, v4, v8'); I(f'v_xor_b32 v{vXrd+1}, 64, v{vXrd}')
    I(f'v_add_u32 v{vXrd+2}, {4*RG}, v{vXrd}'); I(f'v_add_u32 v{vXrd+3}, {4*RG}, v{vXrd+1}')
    I('v_lshl_add_u32 v4, v6, 1, v7'); I(f'v_lshlrev_b32 v8, 2, v{vg}'); I('v_xor_b32 v4, v4, v8'); I('v_lshlrev_b32 v4, 4, v4')
    I(f'v_lshl_add_u32 v4, v{vq}, 8, v4'); I(f'v_add_u32 v{KA(0)}, s42, v4')
    for ks in range(1,4): I(f'v_xor_b32 v{KA(ks)}, {ks*16}, v{KA(0)}')
    I(f'v_lshrrev_b32 v4, 1, v{vg}'); I('v_lshl_add_u32 v4, v12, 1, v4'); I('v_lshrrev_b32 v6, 1, v11'); I('v_xor_b32 v4, v4, v6'); I('v_lshlrev_b32 v4, 4, v4')
    I('v_and_b32 v6, 1, v11'); I('v_lshl_add_u32 v4, v6, 3, v4'); I('v_add_u32 v8, v8, v10'); I('v_lshl_add_u32 v4, v8, 8, v4'); I(f'v_add_u32 v{VA(0)}, s42, v4')
    for dt in range(1,8): I(f'v_xor_b32 v{VA(dt)}, {dt*32}, v{VA(0)}')
    I(f'v_lshrrev_b32 v4, 1, v{vg}'); I(f'v_mul_u32_u24 v4, 768, v4'); I(f'v_lshl_add_u32 v4, v{vq}, 4, v4'); I(f'v_and_b32 v6, 1, v{vg}'); I('v_lshl_add_u32 v4, v6, 3, v4')
    I('v_add_u32 v74, s42, v4'); I(f'v_mul_u32_u24 v4, {2*RG}, v{vg}'); I(f'v_lshl_add_u32 v75, v{vq}, 4, v4')
    for r in range(4): I(f'v_mov_b32 v{ONES+r}, 0x3f803f80')
    I(f's_mov_b32 s52, {hex(f2u(math.log2(math.e)/math.sqrt(128)))}')
    I(f's_mov_b32 s53, {hex(f2u(cfg.get("T",16.0)))}')
    for r in list(range(32,64))+list(range(76,108)): I(f'v_mov_b32 v{r}, 0')
    I(f's_mul_i32 s60, s36, {cfg.get("rot",0)}'); I('s_lshl_b32 s60, s60, 13')
    seq=[]
    for t in range(8):
        seq+=[('K',t,0),('K',t,1)]
        if t==7: seq.append(('W',0,0))
        seq+=[('V',t,0),('V',t,1)]
    slot={g:(n%5)*4096 for n,g in enumerate(seq)}
    nxt=[0]
    def issue():
        n=nxt[0]; nxt[0]+=1
        if n>=len(seq): return
        g=seq[n]; k,t,hf=g
        if k=='W':
            for i in range(4):
                I(f's_add_u32 m0, s42, {slot[g]+i*1024}'); I(f's_mov_b32 s51, {i*16384}')
                I(f'buffer_load_dwordx4 v{vWO}, s[24:27], s51 offen{F('wof')} lds',g)
            return
        I(f's_add_u32 m0, s42, {slot[g]}')
        if cfg.get('rot',0): I(f's_add_u32 s51, s60, {t*8192+hf*4096}'); I('s_and_b32 s51, s51, 0xffff')
        else: I(f's_mov_b32 s51, {t*8192+hf*4096}')
        fl=F('kvf') if t<cfg.get('kvn',8) else ''
        for i in range(4):
            I(f'buffer_load_dwordx4 v{DM(i)}, s[{12 if k=="K" else 16}:{15 if k=="K" else 19}], s51 offen offset:{i*1024}{fl} lds',g)
    QA=lambda j: S(0,j)
    for c in range(16):
        base=((c+2)%6)*QS
        e.wait(vm=[('c',c)]); e.barrier()
        if c in(0,8): ts()
        for ks in range(2):
            for t in range(2): I(f'ds_read_b64_tr_b16 {vr(ks*16+2*t,2)}, v{vWQrd+ks} offset:{base+t*1024}',('a',ks))
            for j in range(3): I(f'ds_read_b128 {vr(ks*16+4+4*j)}, v{vXrd+ks+(2 if j==2 else 0)} offset:{base+2048+(2*RG if j==1 else 0)}',('b',ks,j))
        if c+5<16: dma_chunk(c+5)
        if c in(12,13,14): issue()
        for ks in range(2):
            for j in range(3):
                e.wait(lg=[('a',ks),('b',ks,j)])
                I(f'v_mfma_f32_16x16x32_bf16 {vr(QA(j))}, {vr(ks*16)}, {vr(ks*16+4+4*j)}, '+('0' if c==0 and ks==0 else vr(QA(j))))
    for j in range(3):
        for r in range(4): I(f'v_mul_f32 v{QA(j)+r}, s52, v{QA(j)+r}')
        I(f'v_cvt_pk_bf16_f32 v{QA(j)}, v{QA(j)}, v{QA(j)+1}'); I(f'v_cvt_pk_bf16_f32 v{QA(j)+1}, v{QA(j)+2}, v{QA(j)+3}')
        I(f'ds_write_b64 v74, {vr(QA(j),2)} offset:{QOFF+j*256}','qw')
    e.wait(lg='all'); e.barrier()
    ts()
    for ks in range(4):
        for j in range(3): I(f'ds_read_b128 {vr(Q(j,ks))}, v75 offset:{QOFF+(ks>>1)*RG+(ks&1)*768+j*256}',('q',ks))
    issue()
    def kread(tile,hf,ks): I(f'ds_read_b128 {vr(KB(ks))}, v{KA(ks)} offset:{slot[("K",tile,hf)]}',('kf',tile,hf,ks))
    for r in list(range(0,32))+list(range(64,74)): I(f'v_mov_b32 v{r}, 0')
    e.wait(lg='all')
    I('v_mov_b32 v74, 0'); I('v_mov_b32 v75, 0')
    e.barrier()
    issue()
    e.wait(vm=[('K',0,0)])
    for ks in range(4): kread(0,0,ks)
    e.wait(lg='all'); issue()
    ts()
    rare=[]
    def rowmax(j,d):
        a,b=S(0,j),S(1,j)
        I(f'v_max3_f32 v{d}, v{a}, v{a+1}, v{a+2}'); I(f'v_max3_f32 v{d}, v{d}, v{a+3}, v{b}')
        I(f'v_max3_f32 v{d}, v{d}, v{b+1}, v{b+2}'); I(f'v_max_f32 v{d}, v{d}, v{b+3}')
        I(f'v_mov_b32 v{T1}, v{d}'); I(f'v_permlane32_swap_b32 v{d}, v{T1}'); I(f'v_max_f32 v{d}, v{d}, v{T1}')
        I(f'v_mov_b32 v{T1}, v{d}'); I(f'v_permlane16_swap_b32 v{d}, v{T1}'); I(f'v_max_f32 v{d}, v{d}, v{T1}')
    for tile in range(8):
        e.c(f'---- tile {tile}')
        for t in range(2):
            for ks in range(4):
                e.wait(lg=[('kf',tile,t,ks)])
                if t==1 and ks==3: issue()
                for j in range(3):
                    cc=vr(S(t,j)) if ks else ('0' if tile==0 else vr(NM(j)))
                    I(f'v_mfma_f32_16x16x32_bf16 {vr(S(t,j))}, {vr(KB(ks))}, {vr(Q(j,ks))}, {cc}')
                if t==0:
                    if ks==0: e.wait(vm=[('K',tile,1)])
                    kread(tile,1,ks)
        def vread(t):
            e.wait(vm=[('V',tile,t)])
            for dt in range(8): I(f'ds_read_b64_tr_b16 {vr(VF(dt)+2*t,2)}, v{VA(dt)} offset:{slot[("V",tile,t)]}',('vf',t,dt))
        vread(0)
        if tile==0:
            for j in range(3):
                rowmax(j,T0)
                for t in range(2):
                    for r in range(4): I(f'v_sub_f32 v{S(t,j)+r}, v{S(t,j)+r}, v{T0}')
                for r in range(4): I(f'v_sub_f32 v{NM(j)+r}, 0, v{T0}')
        else:
            regs=[S(t,j)+r for t in range(2) for j in range(3) for r in range(4)]
            I(f'v_max3_f32 v{T0}, v{regs[0]}, v{regs[1]}, v{regs[2]}')
            I(f'v_max3_f32 v{T1}, v{regs[3]}, v{regs[4]}, v{regs[5]}')
            for k in range(6,24,4):
                I(f'v_max3_f32 v{T0}, v{T0}, v{regs[k]}, v{regs[k+1]}')
                if k+3<24: I(f'v_max3_f32 v{T1}, v{T1}, v{regs[k+2]}, v{regs[k+3]}')
            I(f'v_max_f32 v{T0}, v{T0}, v{T1}')
            I(f'v_cmp_lt_f32 vcc, s53, v{T0}')
            I(f's_cbranch_vccnz K1_RARE{tile}')
            e.label(f'K1_BACK{tile}'); rare.append(tile)
        for j in range(3):
            for t in range(2):
                for r in range(4): I(f'v_exp_f32 v{S(t,j)+r}, v{S(t,j)+r}')
            a,b=S(0,j),S(1,j)
            I(f'v_cvt_pk_bf16_f32 v{a}, v{a}, v{a+1}'); I(f'v_cvt_pk_bf16_f32 v{a+1}, v{a+2}, v{a+3}')
            I(f'v_cvt_pk_bf16_f32 v{a+2}, v{b}, v{b+1}'); I(f'v_cvt_pk_bf16_f32 v{a+3}, v{b+2}, v{b+3}')
            if j==0:
                e.wait(lg='all'); issue(); vread(1)
        for j in range(3): I(f'v_mfma_f32_16x16x32_bf16 {vr(L(j))}, {vr(ONES)}, {vr(S(0,j))}, {vr(L(j))}')
        e.wait(lg='all'); issue()
        for dt in range(8):
            for j in range(3): I(f'v_mfma_f32_16x16x32_bf16 {vr(O(dt,j))}, {vr(VF(dt))}, {vr(S(0,j))}, {vr(O(dt,j))}')
            if tile<7:
                if dt==cfg.get('kpre',3):
                    e.wait(vm=[('K',tile+1,0)])
                    for ks in range(4): kread(tile+1,0,ks)
                if dt==cfg.get('kpre',3)+3:
                    e.wait(lg='all'); issue()
        if tile in(0,3,7): ts()
    e.c('epilogue')
    ln,q_,g_=S(0,0),S(0,0)+2,S(0,0)+1
    A0,A1,A2,A3=S(0,1),S(0,1)+1,S(0,1)+2,S(0,1)+3
    I(f'v_mbcnt_lo_u32_b32 v{ln}, -1, 0'); I(f'v_mbcnt_hi_u32_b32 v{ln}, -1, v{ln}')
    I(f'v_and_b32 v{q_}, 15, v{ln}')
    I(f'v_lshlrev_b32 v{A1}, 3, v{q_}'); I(f'v_add_u32 v{A0}, s42, v{A1}'); I(f'v_add_u32 v{A2}, {3*RG}, v{A1}'); I(f'v_add_u32 v{A3}, {6*RG}, v{A1}')
    for j in range(3):
        I(f'v_mov_b32 v{NM(j)+1}, v{L(j)}')
        I(f'ds_write_b64 v{A0}, {vr(NM(j),2)} offset:{MLB+j*128}','ml')
    e.wait(lg='all'); e.barrier()
    ML=lambda j,w: Q(0,0)+(j*8+w)*2
    for j in range(3):
        for w in range(8): I(f'ds_read_b64 {vr(ML(j,w),2)}, v{A1+w//3} offset:{(w%3)*RG+MLB+j*128}',('ml',j))
    SC=lambda j: KB(0)+j
    for j in range(3):
        e.wait(lg=[('ml',j)])
        mn=KB(1)+j
        I(f'v_min3_f32 v{mn}, v{ML(j,0)}, v{ML(j,1)}, v{ML(j,2)}'); I(f'v_min3_f32 v{mn}, v{mn}, v{ML(j,3)}, v{ML(j,4)}')
        I(f'v_min3_f32 v{mn}, v{mn}, v{ML(j,5)}, v{ML(j,6)}'); I(f'v_min_f32 v{mn}, v{mn}, v{ML(j,7)}')
        for w in range(8): I(f'v_sub_f32 v{ML(j,w)}, v{mn}, v{ML(j,w)}')
        I(f'v_sub_f32 v{SC(j)}, v{mn}, v{NM(j)}')
        for w in range(8): I(f'v_exp_f32 v{ML(j,w)}, v{ML(j,w)}')
        I(f'v_exp_f32 v{SC(j)}, v{SC(j)}')
        lt=KB(2)+j
        I(f'v_mul_f32 v{lt}, v{ML(j,0)}, v{ML(j,0)+1}')
        for w in range(1,8): I(f'v_fmac_f32 v{lt}, v{ML(j,w)}, v{ML(j,w)+1}')
        I(f'v_rcp_f32 v{lt}, v{lt}'); I(f'v_mul_f32 v{SC(j)}, v{SC(j)}, v{lt}')
    I(f'v_lshlrev_b32 v{A1}, 3, v{ln}'); I(f'v_add_u32 v{A0}, s42, v{A1}')
    for dt in range(8):
        for j in range(3):
            o=O(dt,j)
            for r in range(4): I(f'v_mul_f32 v{o+r}, v{SC(j)}, v{o+r}')
            I(f'v_cvt_pk_bf16_f32 v{o}, v{o}, v{o+1}'); I(f'v_cvt_pk_bf16_f32 v{o+1}, v{o+2}, v{o+3}')
            I(f'ds_write_b64 v{A0}, {vr(o,2)} offset:{PB+(dt*3+j)*512}','pw')
    I('s_mul_i32 s45, s34, 1536'); I(f'v_add_u32 v{A1}, s45, v{A1}'); I(f'v_add_u32 v{A2}, {3*RG}, v{A1}'); I(f'v_add_u32 v{A3}, {6*RG}, v{A1}')
    I('s_mov_b32 s54, 0x3f80'); I('s_mov_b32 s55, 0x3f800000')
    I('s_lshr_b32 s45, s34, 1'); I('s_mul_i32 s45, s45, 3072'); I('s_lshl_b32 s46, s40, 3'); I('s_add_u32 s45, s45, s46')
    OA=S(0,2); LA=S(0,2)+1
    I(f'v_lshlrev_b32 v{LA}, 4, v{ln}'); I(f'v_add_u32 v{OA}, s45, v{LA}')
    WA=S(1,0); t1,t2=S(1,1),S(1,1)+1
    I(f'v_lshrrev_b32 v{t1}, 2, v{ln}')
    I(f'v_bfe_u32 v{t2}, v{ln}, 3, 2'); I(f'v_lshlrev_b32 v{t2}, 5, v{t2}'); I(f'v_lshl_add_u32 v{t2}, v{t1}, 7, v{t2}')
    I(f'v_and_b32 v{t1}, 3, v{ln}'); I(f'v_lshl_add_u32 v{t2}, v{t1}, 3, v{t2}'); I(f'v_add_u32 v{WA}, s42, v{t2}')
    for v in range(1,4): I(f'v_xor_b32 v{WA+v}, {v*32}, v{WA}')
    WF=lambda v: 212+4*v
    for v in range(4):
        for t in range(2): I(f'ds_read_b64_tr_b16 {vr(WF(v)+2*t,2)}, v{WA+v} offset:{slot[("W",0,0)]+t*2048}',('wf',v))
    e.wait(lg='pw')
    for r in range(12): I(f'v_mov_b32 v{48+r}, 0')
    e.barrier()
    ts()
    I('s_mov_b32 s51, 262144')
    for v in range(4):
        e.wait(lg=[('wf',v)])
        I(f'buffer_store_dwordx4 {vr(WF(v))}, v{LA}, s[28:31], {"s51" if v>>1 else "0"} offen offset:{(v&1)*1024}{F('stf')}')
    for j in range(3):
        for w in range(8): I(f'ds_read_b64 {vr((j*8+w)*2,2)}, v{A1+w//3} offset:{(w%3)*RG+PB+j*512}',('pr',j,w))
    for j in range(3):
        for w in range(8):
            e.wait(lg=[('pr',j,w)])
            p=(j*8+w)*2; a=48+4*j
            I(f'v_dot2c_f32_bf16 v{a}, s54, v{p}'); I(f'v_dot2c_f32_bf16 v{a+1}, s55, v{p}')
            I(f'v_dot2c_f32_bf16 v{a+2}, s54, v{p+1}'); I(f'v_dot2c_f32_bf16 v{a+3}, s55, v{p+1}')
        a=48+4*j
        I(f'v_cvt_pk_bf16_f32 v{60+2*j}, v{a}, v{a+1}'); I(f'v_cvt_pk_bf16_f32 v{61+2*j}, v{a+2}, v{a+3}')
        I(f'buffer_store_dwordx2 {vr(60+2*j,2)}, v{OA}, s[20:23], 0 offen offset:{j*1024}{F('stf')}')
    if TS:
        ts(); e.raw('    s_waitcnt lgkmcnt(0)')
        I('s_lshl_b32 s45, s2, 3'); I('s_add_u32 s45, s45, s34'); I('s_lshl_b32 s45, s45, 7'); I(f's_add_u32 s45, s45, {16<<20}')
        I('s_add_u32 s20, s32, s45'); I('s_addc_u32 s21, s33, 0'); I('s_mov_b32 s22, 128')
        I('v_mov_b32 v2, 0')
        for k in range(tsn[0]):
            I(f'v_mov_b32 v0, s{64+2*k}'); I(f'v_mov_b32 v1, s{65+2*k}'); I(f'buffer_store_dwordx2 v[0:1], v2, s[20:23], 0 offen offset:{8*k}'); e.nop(2)
    e.label('K1_END'); e.raw('    s_endpgm')
    for tile in rare:
        e.label(f'K1_RARE{tile}'); e.nop(8)
        for j in range(3):
            rowmax(j,T0)
            I(f'v_max_f32 v{T0}, 0, v{T0}')
            I(f'v_exp_f32 v{T2}, -v{T0}')
            for t in range(2):
                for r in range(4): I(f'v_sub_f32 v{S(t,j)+r}, v{S(t,j)+r}, v{T0}')
            for r in range(4): I(f'v_sub_f32 v{NM(j)+r}, v{NM(j)+r}, v{T0}')
            for r in range(4): I(f'v_mul_f32 v{L(j)+r}, v{T2}, v{L(j)+r}')
            for dt in range(8):
                for r in range(4): I(f'v_mul_f32 v{O(dt,j)+r}, v{T2}, v{O(dt,j)+r}')
        e.nop(2); I(f's_branch K1_BACK{tile}')
    return e.text()
```

```python
from emit import Em, vr
import struct, math
def f2u(x): return struct.unpack('<I',struct.pack('<f',x))[0]
NAME1='gqa_attn_kernel'
O=lambda dt,j: (dt*3+j)*4
L=lambda j: 96+4*j
Q=lambda j,ks: 108+(j*4+ks)*4
NM=lambda j: 156+4*j
ONES=168
S=lambda t,j: 172+(t*3+j)*4
KB=lambda ks: 196+4*ks
VF=lambda dt: KB(dt) if dt<2 else 212+4*(dt-2)
DM=lambda i: 236+i
KA=lambda ks: 240+ks
VA=lambda dt: 244+dt
T0,T1,T2,vWO=252,253,254,255
RG=20480; QS=3072; QOFF=18432; PB=4096; MLB=16384
WT=4<<20
def gen(cfg):
    e=Em(); I=e.i
    TS=cfg.get('ts',0)
    F=lambda k: (' '+cfg[k]) if cfg.get(k) else ''
    tsn=[0]
    def ts():
        if not TS: return
        k=tsn[0]; tsn[0]+=1
        e.raw(f'    s_memtime s[{64+2*k}:{65+2*k}]')
        e.raw('    s_waitcnt lgkmcnt(0)'); e.lg.clear()
    e.raw(f'.globl {NAME1}\n.p2align 8\n.type {NAME1},@function\n{NAME1}:')
    I('s_cmp_ge_u32 s2, 256'); I('s_cbranch_scc1 K1_END')
    I('s_load_dwordx4 s[24:27], s[0:1], 0')
    I('s_load_dwordx4 s[28:31], s[0:1], 16')
    I('s_load_dwordx2 s[32:33], s[0:1], 56')
    I('s_load_dwordx2 s[56:57], s[0:1], 32')
    ts()
    I('v_lshrrev_b32 v1, 6, v0'); I('v_and_b32 v2, 63, v0')
    I('v_readfirstlane_b32 s34, v1')
    I('s_and_b32 s35, s2, 7'); I('s_lshr_b32 s36, s2, 3')
    I('s_lshr_b32 s37, s35, 1')
    I('s_and_b32 s38, s35, 1'); I('s_lshl_b32 s38, s38, 2'); I('s_lshr_b32 s39, s36, 3'); I('s_add_u32 s38, s38, s39')
    I('s_and_b32 s39, s36, 7'); I('s_lshl_b32 s40, s37, 3'); I('s_add_u32 s39, s39, s40')
    vWQoff,vXoff,vWQrd,vXrd,vg,vq=64,65,66,68,72,73
    I(f'v_lshrrev_b32 v{vg}, 4, v2'); I(f'v_and_b32 v{vq}, 15, v2')
    I('s_and_b32 s40, s34, 1'); I(f's_mul_i32 s42, s34, {RG}')
    I('s_lshl_b32 s41, s40, 3'); I(f'v_lshlrev_b32 v3, 1, v{vg}'); I(f'v_xor_b32 v3, v3, v{vq}')
    I('v_xor_b32 v4, s41, v3'); I('v_lshlrev_b32 v4, 4, v4'); I(f'v_lshl_add_u32 v4, v{vg}, 13, v4')
    I('s_lshl_b32 s41, s34, 16'); I(f'v_add_u32 v{vWQoff}, s41, v4')
    I('s_lshl_b32 s41, s34, 3'); I('v_lshrrev_b32 v5, 3, v2')
    I('v_add_u32 v7, s41, v5'); I('v_bfe_u32 v8, v7, 1, 3'); I('v_and_b32 v9, 7, v2'); I('v_xor_b32 v8, v8, v9')
    I('v_lshlrev_b32 v8, 4, v8'); I(f'v_lshl_add_u32 v{vXoff}, v7, 11, v8')
    e.raw('    s_waitcnt lgkmcnt(0)'); e.lg.clear()
    I('s_mul_i32 s45, s38, 98304'); I('s_add_u32 s4, s24, s45'); I('s_addc_u32 s5, s25, 0'); I('s_mov_b32 s6, 98304'); I('s_mov_b32 s7, 0x20000')
    I('s_lshl_b32 s45, s39, 8'); I('s_add_u32 s8, s30, s45'); I('s_addc_u32 s9, s31, 0'); I('s_sub_u32 s10, 0x800000, s45'); I('s_mov_b32 s11, 0x20000')
    QR=cfg.get('qrot',0)
    if QR: I('s_lshr_b32 s62, s36, 3'); I(f's_mul_i32 s62, s62, {QR}')
    def dma_chunk(c):
        base=((c+2)%6)*QS
        if QR:
            I(f's_add_u32 s63, s62, {c}'); I('s_and_b32 s63, s63, 15'); I('s_lshl_b32 s47, s63, 19'); I('s_add_u32 s48, s47, 32768'); I('s_lshl_b32 s49, s63, 7')
        else:
            I(f's_mov_b32 s47, {c*524288}'); I(f's_mov_b32 s48, {c*524288+32768}'); I(f's_mov_b32 s49, {c*128}')
        I(f's_add_u32 m0, s42, {base}')
        I(f'buffer_load_dwordx4 v{vWQoff}, s[8:11], s47 offen{F("wqf")} lds',('c',c))
        I(f's_add_u32 m0, s42, {base+1024}')
        I(f'buffer_load_dwordx4 v{vWQoff}, s[8:11], s48 offen{F("wqf")} lds',('c',c))
        I(f's_add_u32 m0, s42, {base+2048}')
        I(f'buffer_load_dwordx4 v{vXoff}, s[4:7], s49 offen lds',('c',c))
    for c in range(5): dma_chunk(c)
    I('s_lshl_b32 s45, s38, 2'); I('s_add_u32 s45, s45, s37'); I('s_lshl_b32 s45, s45, 19'); I('s_lshl_b32 s46, s34, 16'); I('s_add_u32 s45, s45, s46')
    I('s_add_u32 s12, s26, s45'); I('s_addc_u32 s13, s27, 0'); I('s_mov_b32 s14, 65536'); I('s_mov_b32 s15, 0x20000')
    I('s_add_u32 s16, s28, s45'); I('s_addc_u32 s17, s29, 0'); I('s_mov_b32 s18, 65536'); I('s_mov_b32 s19, 0x20000')
    I('s_lshl_b32 s45, s38, 5'); I('s_add_u32 s45, s45, s39'); I('s_mul_i32 s45, s45, 12288')
    I('s_add_u32 s20, s32, s45'); I('s_addc_u32 s21, s33, 0'); I('s_mov_b32 s22, 12288'); I('s_mov_b32 s23, 0x20000')
    if cfg.get('wal',0)==2:
        I('s_lshl_b32 s58, s36, 1'); I('s_lshr_b32 s45, s34, 2'); I('s_add_u32 s58, s58, s45')
        I('s_and_b32 s45, s58, 7'); I('s_lshr_b32 s58, s58, 3'); I('s_lshl_b32 s58, s58, 4'); I('s_add_u32 s58, s58, s45')
        I('s_and_b32 s45, s35, 1'); I('s_lshl_b32 s45, s45, 3'); I('s_add_u32 s58, s58, s45')
        I('s_lshl_b32 s59, s37, 2'); I('s_and_b32 s45, s34, 3'); I('s_add_u32 s59, s59, s45')
    elif cfg.get('wal',0):
        I('s_and_b32 s58, s35, 1'); I('s_lshl_b32 s58, s58, 5'); I('s_add_u32 s58, s58, s36'); I('s_lshl_b32 s58, s58, 1'); I('s_lshr_b32 s45, s34, 2'); I('s_add_u32 s58, s58, s45')
        I('s_lshl_b32 s59, s37, 2'); I('s_and_b32 s45, s34, 3'); I('s_add_u32 s59, s59, s45')
    else:
        I('s_lshr_b32 s58, s2, 1'); I('s_and_b32 s59, s2, 1'); I('s_lshl_b32 s59, s59, 3'); I('s_add_u32 s59, s59, s34')
    I('s_lshl_b32 s45, s58, 16'); I('s_lshl_b32 s46, s59, 7'); I('s_add_u32 s45, s45, s46')
    I('s_add_u32 s24, s56, s45'); I('s_addc_u32 s25, s57, 0'); I('s_sub_u32 s26, 65536, s46'); I('s_mov_b32 s27, 0x20000')
    I('s_lshl_b32 s45, s59, 8'); I('s_add_u32 s45, s45, s58'); I('s_lshl_b32 s45, s45, 11'); I(f's_add_u32 s45, s45, {WT}')
    I('s_add_u32 s28, s32, s45'); I('s_addc_u32 s29, s33, 0'); I('s_mov_b32 s30, 264192'); I('s_mov_b32 s31, 0x20000')
    I('v_lshlrev_b32 v4, 4, v3'); I(f'v_lshl_add_u32 v{DM(0)}, v{vg}, 8, v4')
    I(f'v_xor_b32 v{DM(1)}, 128, v{DM(0)}'); I(f'v_xor_b32 v{DM(2)}, 16, v{DM(0)}'); I(f'v_xor_b32 v{DM(3)}, 144, v{DM(0)}')
    I(f'v_lshlrev_b32 v4, 1, v{vg}'); I('v_xor_b32 v4, v4, v9'); I('v_lshlrev_b32 v4, 4, v4'); I(f'v_lshl_add_u32 v{vWO}, v5, 11, v4')
    I(f'v_lshrrev_b32 v10, 2, v{vq}'); I(f'v_and_b32 v11, 3, v{vq}'); I(f'v_and_b32 v12, 1, v{vg}'); I('v_lshl_add_u32 v12, v12, 2, v10')
    I('v_xor_b32 v4, s34, v12'); I('v_lshlrev_b32 v4, 5, v4'); I('v_lshl_add_u32 v4, v10, 8, v4'); I('v_lshl_add_u32 v4, v11, 3, v4')
    I(f'v_mul_u32_u24 v6, {RG}, v{vg}'); I(f'v_add_u32 v{vWQrd}, v4, v6'); I(f'v_add_u32 v{vWQrd+1}, {4*RG}, v{vWQrd}')
    I(f'v_lshrrev_b32 v4, 1, v{vq}'); I(f'v_xor_b32 v4, v4, v{vg}'); I('v_lshlrev_b32 v4, 4, v4'); I(f'v_and_b32 v6, 7, v{vq}'); I('v_lshl_add_u32 v4, v6, 7, v4')
    I(f'v_lshrrev_b32 v7, 3, v{vq}'); I(f'v_mul_u32_u24 v8, {RG}, v7'); I(f'v_add_u32 v{vXrd}, v4, v8'); I(f'v_xor_b32 v{vXrd+1}, 64, v{vXrd}')
    I(f'v_add_u32 v{vXrd+2}, {4*RG}, v{vXrd}'); I(f'v_add_u32 v{vXrd+3}, {4*RG}, v{vXrd+1}')
    I('v_lshl_add_u32 v4, v6, 1, v7'); I(f'v_lshlrev_b32 v8, 2, v{vg}'); I('v_xor_b32 v4, v4, v8'); I('v_lshlrev_b32 v4, 4, v4')
    I(f'v_lshl_add_u32 v4, v{vq}, 8, v4'); I(f'v_add_u32 v{KA(0)}, s42, v4')
    for ks in range(1,4): I(f'v_xor_b32 v{KA(ks)}, {ks*16}, v{KA(0)}')
    I(f'v_lshrrev_b32 v4, 1, v{vg}'); I('v_lshl_add_u32 v4, v12, 1, v4'); I('v_lshrrev_b32 v6, 1, v11'); I('v_xor_b32 v4, v4, v6'); I('v_lshlrev_b32 v4, 4, v4')
    I('v_and_b32 v6, 1, v11'); I('v_lshl_add_u32 v4, v6, 3, v4'); I('v_add_u32 v8, v8, v10'); I('v_lshl_add_u32 v4, v8, 8, v4'); I(f'v_add_u32 v{VA(0)}, s42, v4')
    for dt in range(1,8): I(f'v_xor_b32 v{VA(dt)}, {dt*32}, v{VA(0)}')
    I(f'v_lshrrev_b32 v4, 1, v{vg}'); I(f'v_mul_u32_u24 v4, 768, v4'); I(f'v_lshl_add_u32 v4, v{vq}, 4, v4'); I(f'v_and_b32 v6, 1, v{vg}'); I('v_lshl_add_u32 v4, v6, 3, v4')
    I('v_add_u32 v74, s42, v4'); I(f'v_mul_u32_u24 v4, {2*RG}, v{vg}'); I(f'v_lshl_add_u32 v75, v{vq}, 4, v4')
    for r in range(4): I(f'v_mov_b32 v{ONES+r}, 0x3f803f80')
    I(f's_mov_b32 s52, {hex(f2u(math.log2(math.e)/math.sqrt(128)))}')
    I(f's_mov_b32 s53, {hex(f2u(cfg.get("T",16.0)))}')
    for r in list(range(32,64))+list(range(76,108)): I(f'v_mov_b32 v{r}, 0')
    I(f's_mul_i32 s60, s36, {cfg.get("rot",0)}'); I('s_lshl_b32 s60, s60, 13')
    WTT=cfg.get('wt',7)
    seq=[]
    for t in range(8):
        seq+=[('K',t,0),('K',t,1)]
        if t==WTT: seq.append(('W',0,0))
        seq+=[('V',t,0),('V',t,1)]
    slot={g:(n%5)*4096 for n,g in enumerate(seq)}
    nxt=[0]
    def issue():
        n=nxt[0]; nxt[0]+=1
        if n>=len(seq): return
        g=seq[n]; k,t,hf=g
        if k=='W':
            for i in range(4):
                I(f's_add_u32 m0, s42, {slot[g]+i*1024}'); I(f's_mov_b32 s51, {i*16384}')
                I(f'buffer_load_dwordx4 v{vWO}, s[24:27], s51 offen{F("wof")} lds',g)
            return
        I(f's_add_u32 m0, s42, {slot[g]}')
        if cfg.get('rot',0): I(f's_add_u32 s51, s60, {t*8192+hf*4096}'); I('s_and_b32 s51, s51, 0xffff')
        else: I(f's_mov_b32 s51, {t*8192+hf*4096}')
        fl=F('kvf') if t<cfg.get('kvn',8) else ''
        for i in range(4):
            I(f'buffer_load_dwordx4 v{DM(i)}, s[{12 if k=="K" else 16}:{15 if k=="K" else 19}], s51 offen offset:{i*1024}{fl} lds',g)
    WF=lambda v: 212+4*v
    def wrd(WA,t1,t2,ln):
        I(f'v_lshrrev_b32 v{t1}, 2, v{ln}')
        I(f'v_bfe_u32 v{t2}, v{ln}, 3, 2'); I(f'v_lshlrev_b32 v{t2}, 5, v{t2}'); I(f'v_lshl_add_u32 v{t2}, v{t1}, 7, v{t2}')
        I(f'v_and_b32 v{t1}, 3, v{ln}'); I(f'v_lshl_add_u32 v{t2}, v{t1}, 3, v{t2}'); I(f'v_add_u32 v{WA}, s42, v{t2}')
        for v in range(1,4): I(f'v_xor_b32 v{WA+v}, {v*32}, v{WA}')
        e.wait(vm=[('W',0,0)])
        for v in range(4):
            for t in range(2): I(f'ds_read_b64_tr_b16 {vr(WF(v)+2*t,2)}, v{WA+v} offset:{slot[("W",0,0)]+t*2048}',('wf',v))
    def wst(LA):
        I('s_mov_b32 s61, 262144')
        for v in range(4):
            e.wait(lg=[('wf',v)])
            I(f'buffer_store_dwordx4 {vr(WF(v))}, v{LA}, s[28:31], {"s61" if v>>1 else "0"} offen offset:{(v&1)*1024}{F("wsf")}')
    QA=lambda j: S(0,j)
    for c in range(16):
        base=((c+2)%6)*QS
        e.wait(vm=[('c',c)]); e.barrier()
        if c in(0,8): ts()
        for ks in range(2):
            for t in range(2): I(f'ds_read_b64_tr_b16 {vr(ks*16+2*t,2)}, v{vWQrd+ks} offset:{base+t*1024}',('a',ks))
            for j in range(3): I(f'ds_read_b128 {vr(ks*16+4+4*j)}, v{vXrd+ks+(2 if j==2 else 0)} offset:{base+2048+(2*RG if j==1 else 0)}',('b',ks,j))
        if c+5<16: dma_chunk(c+5)
        if c in(12,13,14): issue()
        for ks in range(2):
            for j in range(3):
                e.wait(lg=[('a',ks),('b',ks,j)])
                I(f'v_mfma_f32_16x16x32_bf16 {vr(QA(j))}, {vr(ks*16)}, {vr(ks*16+4+4*j)}, '+('0' if c==0 and ks==0 else vr(QA(j))))
    for j in range(3):
        for r in range(4): I(f'v_mul_f32 v{QA(j)+r}, s52, v{QA(j)+r}')
        I(f'v_cvt_pk_bf16_f32 v{QA(j)}, v{QA(j)}, v{QA(j)+1}'); I(f'v_cvt_pk_bf16_f32 v{QA(j)+1}, v{QA(j)+2}, v{QA(j)+3}')
        I(f'ds_write_b64 v74, {vr(QA(j),2)} offset:{QOFF+j*256}','qw')
    e.wait(lg='all'); e.barrier()
    ts()
    for ks in range(4):
        for j in range(3): I(f'ds_read_b128 {vr(Q(j,ks))}, v75 offset:{QOFF+(ks>>1)*RG+(ks&1)*768+j*256}',('q',ks))
    issue()
    def kread(tile,hf,ks): I(f'ds_read_b128 {vr(KB(ks))}, v{KA(ks)} offset:{slot[("K",tile,hf)]}',('kf',tile,hf,ks))
    for r in list(range(0,32))+list(range(64,74)): I(f'v_mov_b32 v{r}, 0')
    e.wait(lg='all')
    I('v_mov_b32 v74, 0'); I('v_mov_b32 v75, 0')
    e.barrier()
    issue()
    e.wait(vm=[('K',0,0)])
    for ks in range(4): kread(0,0,ks)
    e.wait(lg='all'); issue()
    ts()
    rare=[]
    def rowmax(j,d):
        a,b=S(0,j),S(1,j)
        I(f'v_max3_f32 v{d}, v{a}, v{a+1}, v{a+2}'); I(f'v_max3_f32 v{d}, v{d}, v{a+3}, v{b}')
        I(f'v_max3_f32 v{d}, v{d}, v{b+1}, v{b+2}'); I(f'v_max_f32 v{d}, v{d}, v{b+3}')
        I(f'v_mov_b32 v{T1}, v{d}'); I(f'v_permlane32_swap_b32 v{d}, v{T1}'); I(f'v_max_f32 v{d}, v{d}, v{T1}')
        I(f'v_mov_b32 v{T1}, v{d}'); I(f'v_permlane16_swap_b32 v{d}, v{T1}'); I(f'v_max_f32 v{d}, v{d}, v{T1}')
    for tile in range(8):
        e.c(f'---- tile {tile}')
        for t in range(2):
            for ks in range(4):
                e.wait(lg=[('kf',tile,t,ks)])
                if t==1 and ks==3: issue()
                for j in range(3):
                    cc=vr(S(t,j)) if ks else ('0' if tile==0 else vr(NM(j)))
                    I(f'v_mfma_f32_16x16x32_bf16 {vr(S(t,j))}, {vr(KB(ks))}, {vr(Q(j,ks))}, {cc}')
                if t==0:
                    if ks==0: e.wait(vm=[('K',tile,1)])
                    kread(tile,1,ks)
        def vread(t):
            e.wait(vm=[('V',tile,t)])
            for dt in range(8): I(f'ds_read_b64_tr_b16 {vr(VF(dt)+2*t,2)}, v{VA(dt)} offset:{slot[("V",tile,t)]}',('vf',t,dt))
        if tile==WTT and WTT<7:
            I('v_mbcnt_lo_u32_b32 v232, -1, 0'); I('v_mbcnt_hi_u32_b32 v232, -1, v232'); I('v_lshlrev_b32 v233, 4, v232')
            wrd(228,234,235,232); wst(233); issue(); e.nop(4)
        vread(0)
        if tile==0:
            for j in range(3):
                rowmax(j,T0)
                for t in range(2):
                    for r in range(4): I(f'v_sub_f32 v{S(t,j)+r}, v{S(t,j)+r}, v{T0}')
                for r in range(4): I(f'v_sub_f32 v{NM(j)+r}, 0, v{T0}')
        else:
            regs=[S(t,j)+r for t in range(2) for j in range(3) for r in range(4)]
            I(f'v_max3_f32 v{T0}, v{regs[0]}, v{regs[1]}, v{regs[2]}')
            I(f'v_max3_f32 v{T1}, v{regs[3]}, v{regs[4]}, v{regs[5]}')
            for k in range(6,24,4):
                I(f'v_max3_f32 v{T0}, v{T0}, v{regs[k]}, v{regs[k+1]}')
                if k+3<24: I(f'v_max3_f32 v{T1}, v{T1}, v{regs[k+2]}, v{regs[k+3]}')
            I(f'v_max_f32 v{T0}, v{T0}, v{T1}')
            I(f'v_cmp_lt_f32 vcc, s53, v{T0}')
            I(f's_cbranch_vccnz K1_RARE{tile}')
            e.label(f'K1_BACK{tile}'); rare.append(tile)
        for j in range(3):
            for t in range(2):
                for r in range(4): I(f'v_exp_f32 v{S(t,j)+r}, v{S(t,j)+r}')
            a,b=S(0,j),S(1,j)
            I(f'v_cvt_pk_bf16_f32 v{a}, v{a}, v{a+1}'); I(f'v_cvt_pk_bf16_f32 v{a+1}, v{a+2}, v{a+3}')
            I(f'v_cvt_pk_bf16_f32 v{a+2}, v{b}, v{b+1}'); I(f'v_cvt_pk_bf16_f32 v{a+3}, v{b+2}, v{b+3}')
            if j==0:
                e.wait(lg='all'); issue(); vread(1)
        for j in range(3): I(f'v_mfma_f32_16x16x32_bf16 {vr(L(j))}, {vr(ONES)}, {vr(S(0,j))}, {vr(L(j))}')
        e.wait(lg='all'); issue()
        for dt in range(8):
            for j in range(3): I(f'v_mfma_f32_16x16x32_bf16 {vr(O(dt,j))}, {vr(VF(dt))}, {vr(S(0,j))}, {vr(O(dt,j))}')
            if tile<7:
                if dt==cfg.get('kpre',3):
                    e.wait(vm=[('K',tile+1,0)])
                    for ks in range(4): kread(tile+1,0,ks)
                if dt==cfg.get('kpre',3)+3:
                    e.wait(lg='all'); issue()
        if tile in(0,3,7): ts()
    e.c('epilogue')
    ln,q_,g_=S(0,0),S(0,0)+2,S(0,0)+1
    A0,A1,A2,A3=S(0,1),S(0,1)+1,S(0,1)+2,S(0,1)+3
    I(f'v_mbcnt_lo_u32_b32 v{ln}, -1, 0'); I(f'v_mbcnt_hi_u32_b32 v{ln}, -1, v{ln}')
    I(f'v_and_b32 v{q_}, 15, v{ln}')
    I(f'v_lshlrev_b32 v{A1}, 3, v{q_}'); I(f'v_add_u32 v{A0}, s42, v{A1}'); I(f'v_add_u32 v{A2}, {3*RG}, v{A1}'); I(f'v_add_u32 v{A3}, {6*RG}, v{A1}')
    for j in range(3):
        I(f'v_mov_b32 v{NM(j)+1}, v{L(j)}')
        I(f'ds_write_b64 v{A0}, {vr(NM(j),2)} offset:{MLB+j*128}','ml')
    e.wait(lg='all'); e.barrier()
    ML=lambda j,w: Q(0,0)+(j*8+w)*2
    for j in range(3):
        for w in range(8): I(f'ds_read_b64 {vr(ML(j,w),2)}, v{A1+w//3} offset:{(w%3)*RG+MLB+j*128}',('ml',j))
    SC=lambda j: KB(0)+j
    for j in range(3):
        e.wait(lg=[('ml',j)])
        mn=KB(1)+j
        I(f'v_min3_f32 v{mn}, v{ML(j,0)}, v{ML(j,1)}, v{ML(j,2)}'); I(f'v_min3_f32 v{mn}, v{mn}, v{ML(j,3)}, v{ML(j,4)}')
        I(f'v_min3_f32 v{mn}, v{mn}, v{ML(j,5)}, v{ML(j,6)}'); I(f'v_min_f32 v{mn}, v{mn}, v{ML(j,7)}')
        for w in range(8): I(f'v_sub_f32 v{ML(j,w)}, v{mn}, v{ML(j,w)}')
        I(f'v_sub_f32 v{SC(j)}, v{mn}, v{NM(j)}')
        for w in range(8): I(f'v_exp_f32 v{ML(j,w)}, v{ML(j,w)}')
        I(f'v_exp_f32 v{SC(j)}, v{SC(j)}')
        lt=KB(2)+j
        I(f'v_mul_f32 v{lt}, v{ML(j,0)}, v{ML(j,0)+1}')
        for w in range(1,8): I(f'v_fmac_f32 v{lt}, v{ML(j,w)}, v{ML(j,w)+1}')
        I(f'v_rcp_f32 v{lt}, v{lt}'); I(f'v_mul_f32 v{SC(j)}, v{SC(j)}, v{lt}')
    I(f'v_lshlrev_b32 v{A1}, 3, v{ln}'); I(f'v_add_u32 v{A0}, s42, v{A1}')
    for dt in range(8):
        for j in range(3):
            o=O(dt,j)
            for r in range(4): I(f'v_mul_f32 v{o+r}, v{SC(j)}, v{o+r}')
            I(f'v_cvt_pk_bf16_f32 v{o}, v{o}, v{o+1}'); I(f'v_cvt_pk_bf16_f32 v{o+1}, v{o+2}, v{o+3}')
            I(f'ds_write_b64 v{A0}, {vr(o,2)} offset:{PB+(dt*3+j)*512}','pw')
    I('s_mul_i32 s45, s34, 1536'); I(f'v_add_u32 v{A1}, s45, v{A1}'); I(f'v_add_u32 v{A2}, {3*RG}, v{A1}'); I(f'v_add_u32 v{A3}, {6*RG}, v{A1}')
    I('s_mov_b32 s54, 0x3f80'); I('s_mov_b32 s55, 0x3f800000')
    I('s_lshr_b32 s45, s34, 1'); I('s_mul_i32 s45, s45, 3072'); I('s_lshl_b32 s46, s40, 3'); I('s_add_u32 s45, s45, s46')
    OA=S(0,2); LA=S(0,2)+1
    I(f'v_lshlrev_b32 v{LA}, 4, v{ln}'); I(f'v_add_u32 v{OA}, s45, v{LA}')
    if WTT==7: wrd(S(1,0),S(1,1),S(1,1)+1,ln)
    e.wait(lg='pw')
    for r in range(12): I(f'v_mov_b32 v{48+r}, 0')
    e.barrier()
    ts()
    if WTT==7: wst(LA)
    for j in range(3):
        for w in range(8): I(f'ds_read_b64 {vr((j*8+w)*2,2)}, v{A1+w//3} offset:{(w%3)*RG+PB+j*512}',('pr',j,w))
    for j in range(3):
        for w in range(8):
            e.wait(lg=[('pr',j,w)])
            p=(j*8+w)*2; a=48+4*j
            I(f'v_dot2c_f32_bf16 v{a}, s54, v{p}'); I(f'v_dot2c_f32_bf16 v{a+1}, s55, v{p}')
            I(f'v_dot2c_f32_bf16 v{a+2}, s54, v{p+1}'); I(f'v_dot2c_f32_bf16 v{a+3}, s55, v{p+1}')
        a=48+4*j
        I(f'v_cvt_pk_bf16_f32 v{60+2*j}, v{a}, v{a+1}'); I(f'v_cvt_pk_bf16_f32 v{61+2*j}, v{a+2}, v{a+3}')
        I(f'buffer_store_dwordx2 {vr(60+2*j,2)}, v{OA}, s[20:23], 0 offen offset:{j*1024}{F("stf")}')
    if TS:
        ts(); e.raw('    s_waitcnt lgkmcnt(0)')
        I('s_lshl_b32 s45, s2, 3'); I('s_add_u32 s45, s45, s34'); I('s_lshl_b32 s45, s45, 7'); I(f's_add_u32 s45, s45, {16<<20}')
        I('s_add_u32 s20, s32, s45'); I('s_addc_u32 s21, s33, 0'); I('s_mov_b32 s22, 128')
        I('v_mov_b32 v2, 0')
        for k in range(tsn[0]):
            I(f'v_mov_b32 v0, s{64+2*k}'); I(f'v_mov_b32 v1, s{65+2*k}'); I(f'buffer_store_dwordx2 v[0:1], v2, s[20:23], 0 offen offset:{8*k}'); e.nop(2)
    e.label('K1_END'); e.raw('    s_endpgm')
    for tile in rare:
        e.label(f'K1_RARE{tile}'); e.nop(8)
        for j in range(3):
            rowmax(j,T0)
            I(f'v_max_f32 v{T0}, 0, v{T0}')
            I(f'v_exp_f32 v{T2}, -v{T0}')
            for t in range(2):
                for r in range(4): I(f'v_sub_f32 v{S(t,j)+r}, v{S(t,j)+r}, v{T0}')
            for r in range(4): I(f'v_sub_f32 v{NM(j)+r}, v{NM(j)+r}, v{T0}')
            for r in range(4): I(f'v_mul_f32 v{L(j)+r}, v{T2}, v{L(j)+r}')
            for dt in range(8):
                for r in range(4): I(f'v_mul_f32 v{O(dt,j)+r}, v{T2}, v{O(dt,j)+r}')
        e.nop(2); I(f's_branch K1_BACK{tile}')
    return e.text()
```

```python
from emit import Em, vr
NAME2='gqa_oproj_kernel'
ACC=lambda v,j: (v*3+j)*4
WT=4<<20
def gen(cfg):
    R=cfg.get('k2ring',11)
    F=lambda s,k: 32+((s%R)*5+k)*4
    vO=24
    e=Em(); I=e.i
    TS=cfg.get('ts',0); tsn=[0]
    def ts():
        if not TS: return
        k=tsn[0]; tsn[0]+=1
        e.raw(f'    s_memtime s[{64+2*k}:{65+2*k}]'); e.raw('    s_waitcnt lgkmcnt(0)'); e.lg.clear()
    e.raw(f'.globl {NAME2}\n.p2align 8\n.type {NAME2},@function\n{NAME2}:')
    I('s_cmp_ge_u32 s2, 256'); I('s_cbranch_scc1 K2_END')
    I('s_load_dwordx2 s[26:27], s[0:1], 40')
    I('s_load_dwordx2 s[28:29], s[0:1], 56')
    ts()
    I('v_lshrrev_b32 v1, 6, v0'); I('v_and_b32 v2, 63, v0')
    I('v_readfirstlane_b32 s34, v1')
    I('s_and_b32 s35, s2, 7'); I('s_lshr_b32 s36, s2, 3')
    I('s_and_b32 s38, s35, 1'); I('s_lshl_b32 s38, s38, 2'); I('s_lshr_b32 s39, s36, 3'); I('s_add_u32 s38, s38, s39')
    I('s_lshr_b32 s37, s35, 1'); I('s_lshl_b32 s37, s37, 3'); I('s_and_b32 s39, s36, 7'); I('s_add_u32 s39, s39, s37')
    I(f'v_lshlrev_b32 v{vO}, 4, v2')
    I('s_lshl_b32 s45, s39, 3'); I('s_add_u32 s45, s45, s34'); I('s_lshl_b32 s45, s45, 15'); I(f's_add_u32 s45, s45, {WT}')
    I('s_lshl_b32 s44, s38, 3'); I('s_add_u32 s44, s44, s34'); I('s_mul_i32 s44, s44, 49152')
    e.raw('    s_waitcnt lgkmcnt(0)')
    I('s_add_u32 s8, s28, s45'); I('s_addc_u32 s9, s29, 0'); I('s_mov_b32 s10, 32768'); I('s_mov_b32 s11, 0x20000')
    I('s_add_u32 s4, s28, s44'); I('s_addc_u32 s5, s29, 0'); I('s_mov_b32 s6, 49152'); I('s_mov_b32 s7, 0x20000')
    I('s_lshl_b32 s60, s39, 1'); I('s_lshl_b32 s61, s38, 2'); I('s_add_u32 s60, s60, s61')
    if cfg.get('k2rot',0)>=2:
        I('s_and_b32 s60, s35, 1'); I(f's_xor_b32 s60, s60, {1 if cfg["k2rot"]==2 else 0}'); I('s_lshl_b32 s60, s60, 3')
    def ld(s):
        if s>=16: return
        if cfg.get('k2rot',0):
            I(f's_add_u32 s61, s60, {s}'); I('s_and_b32 s61, s61, 15'); I('s_lshl_b32 s47, s61, 11'); I('s_mul_i32 s48, s61, 3072')
        else:
            I(f's_mov_b32 s47, {s*2048}'); I(f's_mov_b32 s48, {s*3072}')
        for v in range(2): I(f'buffer_load_dwordx4 {vr(F(s,v))}, v{vO}, s[8:11], s47 offen offset:{v*1024}',(s,v))
        for j in range(3): I(f'buffer_load_dwordx4 {vr(F(s,2+j))}, v{vO}, s[4:7], s48 offen offset:{j*1024}',(s,2+j))
    for s in range(R): ld(s)
    I('s_mov_b32 s12, s26'); I('s_mov_b32 s13, s27'); I('s_mov_b32 s14, 786432'); I('s_mov_b32 s15, 0x20000')
    I('v_lshrrev_b32 v3, 4, v2'); I('v_and_b32 v4, 15, v2')
    I('s_cmp_ge_u32 s34, 3'); I('s_cselect_b32 s50, 1, 0'); I('s_mul_i32 s51, s50, 3'); I('s_sub_u32 s51, s34, s51')
    I('s_mul_i32 s52, s38, 48'); I('s_lshl_b32 s53, s51, 4'); I('s_add_u32 s52, s52, s53'); I('s_lshl_b32 s52, s52, 11')
    I('s_lshl_b32 s53, s50, 5'); I('s_add_u32 s52, s52, s53'); I('s_lshl_b32 s46, s39, 6'); I('s_add_u32 s52, s52, s46')
    I('v_lshlrev_b32 v25, 11, v4'); I('v_lshl_add_u32 v25, v3, 3, v25'); I('v_add_u32 v25, s52, v25')
    I('s_mul_i32 s42, s34, 6144'); I(f'v_add_u32 v26, s42, v{vO}')
    I('s_lshl_b32 s53, s34, 10'); I(f'v_add_u32 v27, s53, v{vO}')
    for s in range(16):
        for j in range(3):
            for v in range(2):
                e.wait(vm=[(s,v),(s,2+j)])
                I(f'v_mfma_f32_16x16x32_bf16 {vr(ACC(v,j))}, {vr(F(s,v))}, {vr(F(s,2+j))}, '+('0' if s==0 else vr(ACC(v,j))))
        ld(s+R)
        if s in(0,7,15): ts()
    for k in range(6): I(f'ds_write_b128 v26, {vr(4*k)} offset:{k*1024}','pw')
    e.wait(lg='all'); e.barrier()
    I('s_cmp_ge_u32 s34, 6'); I('s_cbranch_scc1 K2_END')
    for w in range(8): I(f'ds_read_b128 {vr(32+4*w)}, v27 offset:{w*6144}',('pr',w))
    for w in range(1,8):
        e.wait(lg=[('pr',w)])
        I(f'v_pk_add_f32 v[32:33], v[32:33], {vr(32+4*w,2)}'); I(f'v_pk_add_f32 v[34:35], v[34:35], {vr(34+4*w,2)}')
    I('v_cvt_pk_bf16_f32 v32, v32, v33'); I('v_cvt_pk_bf16_f32 v33, v34, v35')
    I('buffer_store_dwordx2 v[32:33], v25, s[12:15], 0 offen')
    if TS:
        ts()
        I('s_lshl_b32 s45, s2, 3'); I('s_add_u32 s45, s45, s34'); I('s_lshl_b32 s45, s45, 7'); I(f's_add_u32 s45, s45, {17<<20}')
        I('s_add_u32 s4, s28, s45'); I('s_addc_u32 s5, s29, 0'); I('s_mov_b32 s6, 128')
        I('v_mov_b32 v2, 0')
        for k in range(tsn[0]):
            I(f'v_mov_b32 v0, s{64+2*k}'); I(f'v_mov_b32 v1, s{65+2*k}'); I(f'buffer_store_dwordx2 v[0:1], v2, s[4:7], 0 offen offset:{8*k}'); e.nop(2)
    e.label('K2_END'); e.raw('    s_endpgm')
    return e.text(), 32+R*20, 49152
```
